```python
import torch

def _softmax(x, axis=-1):
    return torch.softmax(x, dim=axis)
def _gelu(x):
    return torch.nn.functional.gelu(x, approximate="tanh")
def _silu(x):
    return torch.nn.functional.silu(x)
def _sigmoid(x):
    return torch.sigmoid(x)
def _layernorm(x, axis=-1, eps=1e-5):
    m = x.mean(dim=axis, keepdim=True)
    v = x.var(dim=axis, keepdim=True, unbiased=False)
    return (x - m) / torch.sqrt(v + eps)
def _scatter_add(tgt, idx, src, axis=0):
    return tgt.clone().index_add_(axis, idx, src)
def _segment_sum(src, seg, n):
    out = torch.zeros((n,) + src.shape[1:], dtype=src.dtype)
    return out.index_add_(0, seg, src)
def _pad(x, pw):
    flat = tuple(v for pair in reversed(pw) for v in pair)
    return torch.nn.functional.pad(x, flat)

kernel_name = 'sequential_preLN__sliding_local_dilated__dense_activation_silu__prompt'

def setup_inputs():

    _w = (lambda a: (lambda t: t.to(torch.bfloat16) if t.is_floating_point() else t)(torch.as_tensor(a)))
    def _A_setup():
        B, S, D = 1, 2048, 640
        return {
            "x": _w((lambda *s: torch.randn(*s, dtype=torch.bfloat16) * 0.05)(B, S, D)),
            "wqkv": _w((lambda *s: torch.randn(*s, dtype=torch.bfloat16) * 0.05)(D, 3 * D)),
            "wo": _w((lambda *s: torch.randn(*s, dtype=torch.bfloat16) * 0.05)(D, D)),
        }
    _A_in = _A_setup()

    def _B_setup():
        B, S, D, F = 1, 2048, 640, 1728
        return {
            "x": _w((lambda *s: torch.randn(*s, dtype=torch.bfloat16) * 0.05)(B, S, D)),
            "w1": _w((lambda *s: torch.randn(*s, dtype=torch.bfloat16) * 3.2)(D, F) * (D ** -0.5)),
            "w2": _w((lambda *s: torch.randn(*s, dtype=torch.bfloat16) * 0.4)(F, D) * (F ** -0.5)),
        }
    _B_in = _B_setup()

    return {
        "A_x": _A_in["x"],
        "A_wqkv": _A_in["wqkv"],
        "A_wo": _A_in["wo"],
        "B_x": _B_in["x"],
        "B_w1": _B_in["w1"],
        "B_w2": _B_in["w2"],
    }

def reference(A_x, A_wqkv, A_wo, B_x, B_w1, B_w2):
    def _A_ref(x, wqkv, wo):
        B, S, D = x.shape
        H = 32; Dh = D // H
        W, dil = 8, 2
        qkv = (lambda x, *d: x.permute(*d))((x @ wqkv).reshape(B, S, 3, H, Dh), 2, 0, 3, 1, 4)
        q, k, v = qkv[0], qkv[1], qkv[2]
        scale = Dh ** -0.5
        pos = torch.arange(S)
        off = torch.arange(W) * dil
        idx = pos[:, None] - off[None, :]
        mask = idx >= 0
        idx_c = torch.where(mask, idx, 0).reshape(-1)
        kg = k[:, :, idx_c, :].reshape(B, H, S, W, Dh)
        vg = v[:, :, idx_c, :].reshape(B, H, S, W, Dh)
        logits = torch.einsum("bhsd,bhswd->bhsw", q, kg) * scale
        logits = torch.where(mask[None, None, :, :], logits, -1e9)
        attn = _softmax(logits, axis=-1)
        o = torch.einsum("bhsw,bhswd->bhsd", attn, vg)
        return (lambda x, *d: x.permute(*d))(o, 0, 2, 1, 3).reshape(B, S, D) @ wo

    def _B_ref(x, w1, w2):
        h = torch.einsum("bsd,df->bsf", x, w1)
        h = _silu(h)
        out = torch.einsum("bsf,fd->bsd", h, w2)
        return out

    x = A_x
    h = x + _A_ref(_layernorm(x, axis=-1), A_wqkv, A_wo)
    h2 = h + _B_ref(_layernorm(h, axis=-1), B_w1, B_w2)
    return h2
```

```python
import re

TRANS = ("v_exp_f32", "v_log_f32", "v_rcp_f32", "v_rsq_f32", "v_sqrt_f32", "v_sin_f32", "v_cos_f32")
REG = re.compile(r"\b([vas])\[(\d+):(\d+)\]|\b([vas])(\d+)\b|\b(vcc|exec|m0|scc)\b")

def regs_of(txt):
    out = []
    for m in REG.finditer(txt):
        if m.group(1):
            out += [(m.group(1), i) for i in range(int(m.group(2)), int(m.group(3)) + 1)]
        elif m.group(4):
            out.append((m.group(4), int(m.group(5))))
        else:
            out.append((m.group(6), 0))
    return out

def split_ops(rest):
    ops, depth, cur = [], 0, ""
    for ch in rest:
        if ch == "[": depth += 1
        if ch == "]": depth -= 1
        if ch == "," and depth == 0:
            ops.append(cur.strip()); cur = ""
        else: cur += ch
    if cur.strip(): ops.append(cur.strip())
    return ops

class Ins:
    def __init__(self, txt, cond):
        self.txt = txt; self.cond = cond
        self.tok = None
        t = txt.split(";")[0].strip()
        self.label = t.endswith(":")
        self.pseudo = t.startswith(".") or t == "" or self.label
        self.op = t.split()[0] if t else ""
        rest = t[len(self.op):].strip()
        rest_nomod = re.sub(r"\b(op_sel|op_sel_hi|neg_lo|neg_hi|quad_perm):\[[^\]]*\]", "", rest)
        ops = split_ops(rest_nomod)
        self.ops = ops
        op = self.op
        self.kind = "other"; self.dst = []; self.src = []
        if self.pseudo: return
        R = [regs_of(o) for o in ops]
        flat = lambda l: [r for x in l for r in x]
        if op.startswith("v_mfma"):
            self.kind = "mfma"; self.dst = R[0]; self.A = R[1]; self.B = R[2]; self.C = R[3]; self.src = flat(R[1:])
            self.passes = 8 if "32x32" in op else 4
        elif op.startswith("v_"):
            self.kind = "valu"
            self.dot = op.startswith("v_dot")
            self.trans = op.replace("_e32", "").replace("_e64", "") in TRANS
            self.dpp = ("_dpp" in op) or ("row_" in rest) or ("quad_perm" in rest)
            self.perm = op.startswith("v_permlane")
            self.rdlane = op.startswith("v_readlane") or op.startswith("v_readfirstlane")
            if self.perm:
                self.dst = flat(R[:2]); self.src = flat(R[:2])
            elif op.startswith("v_add_co") or op.startswith("v_addc_co") or op.startswith("v_sub_co"):
                self.dst = flat(R[:2]); self.src = flat(R[2:])
            else:
                self.dst = R[0]; self.src = flat(R[1:])
                if op.startswith("v_fmac") or op.startswith("v_dot2c") or self.dpp or op.startswith("v_writelane"):
                    self.src = self.src + R[0]
        elif op.startswith("ds_"):
            self.kind = "ds"
            if op.startswith("ds_read") or op.startswith("ds_bpermute") or op.startswith("ds_swizzle") or "_rtn" in op:
                self.dst = R[0]; self.src = flat(R[1:])
            else: self.src = flat(R)
        elif op.startswith("buffer_") or op.startswith("global_"):
            self.kind = "vmem"
            self.lds = bool(re.search(r"\blds\b", rest))
            self.store = "store" in op
            if op in ("buffer_wbl2", "buffer_inv"): pass
            elif self.lds: self.src = flat(R) + [("m0", 0)]
            elif "load" in op: self.dst = R[0]; self.src = flat(R[1:])
            elif "atomic" in op:
                self.src = flat(R)
                if re.search(r"\bsc0\b", rest): self.dst = R[0]
            else:
                self.src = flat(R); self.data = R[0]
                self.wide = op.endswith("x4") or op.endswith("x3")
        elif op.startswith("s_load") or op.startswith("s_memtime") or op.startswith("s_memrealtime"):
            self.kind = "smem"; self.dst = R[0]; self.src = flat(R[1:])
        elif op.startswith("s_"):
            self.kind = "salu"
            if op.startswith("s_cmp") or op.startswith("s_cbranch") or op in ("s_branch", "s_nop", "s_waitcnt", "s_barrier", "s_endpgm", "s_sleep", "s_setprio"):
                self.src = flat(R)
            else:
                self.dst = R[0] if R else []; self.src = flat(R[1:])
                if "saveexec" in op: self.dst = self.dst + [("exec", 0)]

class Asm:
    def __init__(self):
        self.ins = []; self.cond = (); self.ncond = 0; self.nlab = 0
    def __call__(self, s):
        last = None
        for l in s.split("\n"):
            l = l.strip()
            if not l: continue
            last = Ins(l, self.cond); self.ins.append(last)
        return last
    def lab(self, p="L"):
        self.nlab += 1; return f"{p}_{self.nlab}"
    def wait(self, *toks):
        i = Ins(".wait", self.cond); i.tok = [t for t in toks if t is not None]; self.ins.append(i)
    def cond_begin(self):
        self.ncond += 1; self.cond = self.cond + (self.ncond,)
    def cond_end(self):
        self.cond = self.cond[:-1]
    def reset(self):
        self.ins.append(Ins(".reset", self.cond))

    def finalize(self):
        out = []
        vm = []; lg = []
        smem_pending = []
        hist = []
        ws = 0
        def certain(op, here):
            return op.cond == here.cond[:len(op.cond)]
        def need(q, op, here):
            idx = q.index(op)
            return sum(1 for o in q[idx + 1:] if certain(o, here))
        def emit(txt, n=1, ins=None):
            out.append(txt); hist.append((ins, n, I.cond))
        def back(I):
            pref = lambda a, b: a == b[:len(a)]
            dI = 0; extra = {}
            for k in range(len(hist) - 1, -1, -1):
                P, n, c = hist[k]
                if P is not None:
                    d = dI + sum(v for cc, v in extra.items() if pref(cc, c))
                    if d < 20: yield P, d
                if pref(c, I.cond): dI += n
                else: extra[c] = extra.get(c, 0) + n
                if dI >= 20: break
        for I in self.ins:
            if I.txt == ".reset":
                vm = []; lg = []; smem_pending = []; hist.clear(); continue
            if I.pseudo and I.tok is None:
                out.append(I.txt); continue
            nv = nl = None
            touched = set(I.src) | set(I.dst)
            cands_v = [o for o in vm if (I.tok is not None and o in I.tok) or (touched & set(o.dst))]
            cands_l = [o for o in lg if (I.tok is not None and o in I.tok) or (touched & set(o.dst))]
            if cands_v: nv = min(63, min(need(vm, o, I) for o in cands_v))
            if cands_l: nl = min(15, min(need(lg, o, I) for o in cands_l))
            if any(touched & set(o.dst) for o in smem_pending): nl = 0
            if smem_pending and nl is not None: nl = 0
            if nv is not None or nl is not None:
                emit("s_waitcnt" + (f" vmcnt({nv})" if nv is not None else "") + (f" lgkmcnt({nl})" if nl is not None else ""))
                def retire(q, cands):
                    last = max(q.index(o) for o in cands)
                    return [o for k, o in enumerate(q) if k > last or not (I.cond == o.cond[:len(I.cond)] or I.cond == ())]
                if nv is not None: vm = retire(vm, cands_v)
                if nl is not None:
                    if cands_l: lg = retire(lg, cands_l)
                    if nl == 0: smem_pending = []; lg = [o for o in lg if not (I.cond == o.cond[:len(I.cond)] or I.cond == ())]
            if I.tok is not None: continue
            if I.op == "s_waitcnt":
                m = re.search(r"vmcnt\((\d+)\)", I.txt)
                if m and I.cond == ():
                    n = int(m.group(1)); vm = vm[len(vm) - n:] if n else []
                m = re.search(r"lgkmcnt\((\d+)\)", I.txt)
                if m and I.cond == ():
                    n = int(m.group(1)); lg = lg[len(lg) - n:] if n else []
                    if n == 0: smem_pending = []
            req = 0
            S = set(I.src); D = set(I.dst)
            for P, dist in back(I):
                r = 0
                PD = set(P.dst)
                if P.kind == "mfma":
                    big = 12 if P.passes == 8 else 8
                    if I.kind == "mfma":
                        if PD & (set(I.A) | set(I.B)): r = big
                        elif PD & set(I.C) and not (P.dst == I.C and P.passes == I.passes): r = big - 2
                        elif PD & D and P.dst != I.C: r = big
                    elif I.kind in ("valu", "ds", "vmem"):
                        if PD & (S | D): r = big
                        if I.kind == "valu" and set(P.C) & D: r = max(r, 7 if P.passes == 8 else 3)
                elif P.kind == "valu":
                    vd = {x for x in PD if x[0] in "va"}
                    sd = {x for x in PD if x[0] in ("s", "vcc")}
                    if I.kind == "mfma" and vd & S: r = 3 if P.dot else 2
                    if P.dot and I.kind in ("valu", "ds", "vmem") and vd & (S | D):
                        same = I.kind == "valu" and I.op == P.op
                        if same:
                            ab = set(regs_of(I.ops[1]) + regs_of(I.ops[2]))
                            if vd & ab: r = 3
                        else: r = 3
                    if I.kind == "valu":
                        if P.trans and not I.trans and vd & S: r = max(r, 1)
                        if (I.perm or I.dpp) and vd & S: r = max(r, 2)
                        if I.rdlane and vd & S: r = max(r, 1)
                        if sd & S: r = max(r, 4 if I.op.startswith("v_readlane") or I.op.startswith("v_writelane") else 2)
                        if "op_sel" in P.txt and not P.op.startswith("v_pk") and vd & (S | D): r = max(r, 1)
                    if I.kind == "vmem" and sd & S: r = max(r, 5)
                elif P.kind == "salu":
                    if ("m0", 0) in PD and I.kind == "vmem" and I.lds: r = 1
                elif P.kind == "vmem" and getattr(P, "wide", False):
                    if set(P.data) & D: r = 2 if I.kind in ("valu", "mfma") else 1
                if r - dist > req: req = r - dist
            while req > 0:
                n = min(req, 16); emit(f"s_nop {n-1}", n); req -= n
            n = 1
            if I.op == "s_nop": n = int(I.ops[0]) + 1
            emit(I.txt, n, I)
            if I.kind == "vmem": vm.append(I)
            elif I.kind == "ds": lg.append(I)
            elif I.kind == "smem": smem_pending.append(I)
        return "\n".join(out) + "\n"

class Regs:
    def __init__(self, kind, lo, hi):
        self.kind = kind; self.p = lo; self.hi = hi
    def get(self, n=1, align=None):
        al = align or (1 if n == 1 else 2 if n == 2 else 4 if self.kind == "s" else 2)
        self.p = (self.p + al - 1) // al * al
        b = self.p; self.p += n
        assert self.p <= self.hi, f"out of {self.kind} regs"
        return b

def R(kind, b, n=1):
    return f"{kind}{b}" if n == 1 else f"{kind}[{b}:{b+n-1}]"
V = lambda b, n=1: R("v", b, n)
AG = lambda b, n=1: R("a", b, n)
S = lambda b, n=1: R("s", b, n)
```

```python
import sys, struct
sys.path.insert(0, "tools")
from asmfw import *

NAME = "sequential_preLN__sliding_local_dilated__dense_activation_silu__prompt"
f2u = lambda x: hex(struct.unpack("<I", struct.pack("<f", x))[0])

WS_GROUP = 4 << 20
QCS = 272 * 16
W_QKV = 0
W_ST1 = 0x100000
W_HS = 0x102000
W_FLG = 0x108000
W_O = 0x110000
W_H = 0x160000
W_H1 = 0x1B0000
BIG = 0x7F000000

sG, sM, sW, sTAG = 4, 5, 6, 7
rX, rWQ, rWO, rW1, rW2, rOUT, rWS, rDBG = [S(8 + 4 * i, 4) for i in range(8)]
MF = "v_mfma_f32_32x32x16_bf16"

def weave(a, mfmas, fill, first=0):
    n = len(mfmas); k = 0
    for i, m in enumerate(mfmas):
        a(m)
        if i < first: continue
        tgt = (len(fill) * (i + 1 - first) + (n - first) - 1) // (n - first)
        while k < tgt:
            f = fill[k]; k += 1
            f() if callable(f) else a(f)
    while k < len(fill):
        f = fill[k]; k += 1
        f() if callable(f) else a(f)

def prologue(a, end):
    a(f"""s_cmp_ge_u32 s2, 256
    s_cbranch_scc1 {end}
    s_load_dwordx4 s[40:43], s[0:1], 0
    s_load_dwordx2 s[44:45], s[0:1], 16
    s_load_dwordx4 s[48:51], s[0:1], 32
    s_load_dwordx4 s[52:55], s[0:1], 48
    s_load_dwordx2 s[56:57], s[0:1], 64
    v_lshrrev_b32 v1, 6, v0
    v_and_b32 v0, 63, v0
    v_readfirstlane_b32 s{sW}, v1
    s_and_b32 s{sG}, s2, 7
    s_lshr_b32 s{sM}, s2, 3
    s_mov_b32 s{sTAG}, 1
    s_lshl_b32 s3, s{sG}, 22""")
    for i, (src, n) in enumerate([(40, 2048 * 1280), (42, 640 * 3840), (44, 640 * 1280), (48, 640 * 3456), (50, 1728 * 1280), (52, 2048 * 1280), (56, WS_GROUP), (54, 256)]):
        d = 8 + 4 * i
        a(f"s_mov_b32 s{d+2}, {n}\ns_mov_b32 s{d+3}, 0x20000")
    for i, (src, n) in enumerate([(40, 0), (42, 0), (44, 0), (48, 0), (50, 0), (52, 0), (56, 0), (54, 0)]):
        d = 8 + 4 * i
        if i == 6: a(f"s_add_u32 s{d}, s{src}, s3\ns_addc_u32 s{d+1}, s{src+1}, 0")
        else: a(f"s_mov_b32 s{d}, s{src}\ns_mov_b32 s{d+1}, s{src+1}")

def lane_tr(a, v, t):
    a(f"""v_and_b32 v{v}, 16, v0
    v_lshlrev_b32 v{v}, 1, v{v}
    v_and_b32 v{t}, 1, v0
    v_lshl_or_b32 v{v}, v{t}, 4, v{v}
    v_and_b32 v{t}, 2, v0
    v_lshl_or_b32 v{v}, v{t}, 2, v{v}
    v_lshrrev_b32 v{t}, 5, v0
    v_bfe_u32 v{t+1}, v0, 2, 2
    v_lshl_or_b32 v{t}, v{t}, 3, v{t+1}""")

def st0(a):
    vr = Regs("v", 1, 256)
    vo = vr.get(); vs = vr.get(); X = vr.get(200, 4); T = vr.get(8, 4)
    a(f"""v_lshrrev_b32 v{vs}, 3, v0
    v_mul_u32_u24 v{vo}, 1280, v{vs}
    v_and_b32 v{T}, 7, v0
    v_lshl_add_u32 v{vo}, v{T}, 4, v{vo}
    v_lshlrev_b32 v{vs}, 4, v{vs}
    s_sub_u32 s40, s{sM}, 30
    s_mul_i32 s40, s40, 136
    s_lshl_b32 s41, s{sW}, 3
    s_add_u32 s40, s40, s41
    s_lshl_b32 s41, s{sG}, 8
    s_add_u32 s41, s41, s40
    s_sub_u32 s41, s41, 16
    s_mov_b32 s48, 0x3f803f80""")
    for i in range(5):
        a(f"s_add_u32 s42, s41, {32*i}\ns_mul_i32 s{43+i}, s42, 1280\ns_cmp_lt_i32 s42, 0\ns_cselect_b32 s{43+i}, {BIG}, s{43+i}")
        if i == 4: a(f"s_cmp_lg_u32 s{sW}, 0\ns_cselect_b32 s{43+i}, {BIG}, s{43+i}")
        for j in range(10):
            a(f"buffer_load_dwordx4 {V(X+40*i+4*j,4)}, v{vo}, {rX}, s{43+i} offen offset:{128*j}")
    a(f"s_lshl_b32 s40, s40, 4\ns_add_u32 s40, s40, {W_ST1}")
    for i in range(5):
        a(f"v_mov_b32 v{T}, 0\nv_mov_b32 v{T+1}, 0")
        for j in range(40):
            a(f"v_dot2_f32_bf16 v{T}, v{X+40*i+j}, s48, v{T}\nv_dot2_f32_bf16 v{T+1}, v{X+40*i+j}, v{X+40*i+j}, v{T+1}")
        for d in ("quad_perm:[1,0,3,2]", "quad_perm:[2,3,0,1]", "row_half_mirror"):
            for q in (0, 1): a(f"v_add_f32_dpp v{T+q}, v{T+q}, v{T+q} {d} row_mask:0xf bank_mask:0xf")
        a(f"""v_mul_f32 v{T}, {f2u(1/640)}, v{T}
        v_mul_f32 v{T+2}, v{T}, v{T}
        v_mul_f32 v{T+1}, {f2u(1/640)}, v{T+1}
        v_sub_f32 v{T+1}, v{T+1}, v{T+2}
        v_max_f32 v{T+1}, 0, v{T+1}
        v_add_f32 v{T+1}, {f2u(1e-5)}, v{T+1}
        v_rsq_f32 v{T+4}, v{T+1}
        v_mov_b32 v{T+6}, s{sTAG}
        v_mov_b32 v{T+7}, s{sTAG}
        v_mul_f32 v{T+5}, v{T}, v{T+4}
        v_sub_f32 v{T+5}, 0, v{T+5}""")
        if i == 4: a(f"s_cmp_lg_u32 s{sW}, 0\ns_cselect_b32 s40, {BIG}, s40")
        a(f"s_mov_b32 exec_lo, 0x01010101\ns_mov_b32 exec_hi, 0x01010101")
        a(f"buffer_store_dwordx4 {V(T+4,4)}, v{vs}, {rWS}, s40 offen offset:{512*i} sc1")
        a("s_mov_b64 exec, -1")

def st1(a, cfg):
    NS = cfg.get("nslot", 4); HALO = NS * 32768; HST = 2176
    vr = Regs("v", 1, 256)
    ACC = vr.get(80, 4)
    BF = [vr.get(20, 4) for _ in range(2)]; AF = [vr.get(4, 4) for _ in range(2)]
    VX = vr.get(4); VW = vr.get(4); VH = vr.get()
    nb = (NS + 1) // 2
    RB = [vr.get(4) for _ in range(nb)]; RA = [vr.get() for _ in range(nb)]; RH = vr.get(4)
    T = vr.get(8, 4); CS = vr.get(16, 4); ST = vr.get(20, 4); PK = vr.get(16, 4); VS = vr.get(3)
    sCT, sRT, sXO, sWO_, sHO, sKC, sM0, sT = 40, 41, 42, 43, 44, 45, 46, 47
    a(f"""s_lshr_b32 s{sCT}, s{sM}, 1
    s_and_b32 s{sRT}, s{sM}, 1""")
    a(f"""v_lshrrev_b32 v{T}, 3, v0
    s_lshl_b32 s{sT}, s{sW}, 5
    v_add_u32 v{T+1}, s{sT}, v{T}
    v_mul_u32_u24 v{T+1}, 1280, v{T+1}
    v_lshrrev_b32 v{T+2}, 4, v0
    v_and_b32 v{T+3}, 7, v0
    v_xor_b32 v{T+3}, v{T+3}, v{T+2}
    v_lshl_add_u32 v{VX}, v{T+3}, 4, v{T+1}
    v_xor_b32 v{T+4}, 64, v{VX}
    v_add_u32 v{VX+1}, {10240-1024}, v{T+4}
    v_add_u32 v{VX+2}, {20480-2048}, v{VX}
    v_add_u32 v{VX+3}, {30720-3072}, v{T+4}
    s_and_b32 s{sT}, s{sW}, 1
    s_lshl_b32 s{sT+1}, s{sT}, 3
    v_add_u32 v{T+1}, s{sT+1}, v{T}
    v_mul_u32_u24 v{T+1}, 1280, v{T+1}
    v_lshl_add_u32 v{VH}, v{T+3}, 4, v{T+1}
    s_lshl_b32 s{sT}, s{sT}, 6
    v_xor_b32 v{VH}, s{sT}, v{VH}
    s_lshl_b32 s{sT}, s{sW}, 4
    v_add_u32 v{T+1}, s{sT}, v{T+2}
    v_mul_u32_u24 v{T+1}, 3840, v{T+1}
    v_and_b32 v{T+3}, 15, v0
    v_lshlrev_b32 v{T+2}, 2, v{T+2}
    v_xor_b32 v{T+3}, v{T+3}, v{T+2}
    v_lshl_add_u32 v{VW}, v{T+3}, 4, v{T+1}""")
    for i in range(1, 4): a(f"v_add_u32 v{VW+i}, {i*(4*3840-1024)}, v{VW}")
    rot = cfg.get("rot", (0, 0))
    a(f"""s_lshl_b32 s{sXO}, s{sG}, 8
    s_lshl_b32 s{sT}, s{sRT}, 7
    s_add_u32 s{sXO}, s{sXO}, s{sT}
    s_mul_i32 s{sXO}, s{sXO}, 1280
    s_sub_u32 s{sHO}, s{sXO}, {16*1280}
    s_cmp_eq_u32 s{sG}, 0
    s_cselect_b32 s{sHO}, {BIG}, s{sHO}
    s_lshl_b32 s{sWO_}, s{sCT}, 8
    s_mul_i32 s{sKC}, s{sCT}, {rot[0]}
    s_mul_i32 s{sT}, s{sRT}, {rot[1]}
    s_add_u32 s{sKC}, s{sKC}, s{sT}
    s_mul_i32 s{sT}, s{sKC}, 205
    s_lshr_b32 s{sT}, s{sT}, 11
    s_mul_i32 s{sT}, s{sT}, 10
    s_sub_u32 s{sKC}, s{sKC}, s{sT}
    s_lshl_b32 s{sM0}, s{sW}, 12
    s_lshl_b32 s49, s{sW}, 10
    s_lshr_b32 s{sT}, s{sW}, 1
    s_or_b32 s50, s{sT}, s{sRT}""")
    toks = {}
    def dma_stage(s):
        sl = (s % NS) * 32768
        F = []
        def f0():
            a(f"s_lshl_b32 s51, s{sKC}, 7\ns_add_u32 s52, s51, s{sXO}\ns_add_u32 m0, s{sM0}, {sl}")
            a(f"buffer_load_dwordx4 v{VX}, {rX}, s52 offen lds")
        F.append(f0)
        for i in range(1, 4): F.append(f"buffer_load_dwordx4 v{VX+i}, {rX}, s52 offen offset:{1024*i} lds")
        def fh():
            L = a.lab("Lh")
            a(f"s_cmp_lg_u32 s50, 0\ns_cbranch_scc1 {L}"); a.cond_begin()
            a(f"s_add_u32 s53, s51, s{sHO}\ns_add_u32 m0, s49, {HALO + s*HST}")
            a(f"buffer_load_dwordx4 v{VH}, {rX}, s53 offen lds")
            a.cond_end(); a(f"{L}:")
        F.append(fh)
        def f1():
            a(f"s_mul_i32 s54, s{sKC}, {64*3840}\ns_add_u32 s54, s54, s{sWO_}\ns_add_u32 m0, s{sM0}, {sl+16384}")
            a(f"buffer_load_dwordx4 v{VW}, {rWQ}, s54 offen lds")
        F.append(f1)
        for i in range(1, 3): F.append(f"buffer_load_dwordx4 v{VW+i}, {rWQ}, s54 offen offset:{1024*i} lds")
        def f2():
            toks[s] = a(f"buffer_load_dwordx4 v{VW+3}, {rWQ}, s54 offen offset:3072 lds")
            a(f"s_add_u32 s{sKC}, s{sKC}, 1\ns_cmp_eq_u32 s{sKC}, 10\ns_cselect_b32 s{sKC}, 0, s{sKC}")
        F.append(f2)
        return F
    for s in range(NS):
        for f in dma_stage(s): f() if callable(f) else a(f)
    a(f"""v_and_b32 v{T}, 31, v0
    v_lshrrev_b32 v{T+1}, 5, v0
    v_bfe_u32 v{T+2}, v0, 1, 3
    v_xor_b32 v{T+1}, v{T+1}, v{T+2}
    v_lshlrev_b32 v{T+1}, 4, v{T+1}
    v_lshl_add_u32 v{RB[0]}, v{T}, 7, v{T+1}""")
    for j in range(1, 4): a(f"v_xor_b32 v{RB[0]+j}, {32*j}, v{RB[0]}")
    a(f"v_cmp_gt_u32 vcc, 16, v{T}\nv_mov_b32 v{T+3}, {HALO+2048}")
    for j in range(4):
        a(f"v_add_u32 v{RH+j}, {HALO-2048}, v{RB[0]+j}\nv_cndmask_b32 v{RH+j}, v{RH+j}, v{T+3}, vcc")
    for b in range(1, nb):
        for j in range(4): a(f"v_add_u32 v{RB[b]+j}, {65536*b}, v{RB[0]+j}")
    lane_tr(a, RA[0], T)
    a(f"""v_lshl_add_u32 v{RA[0]}, v{T}, 8, v{RA[0]}
    v_xor_b32 v{T+1}, s{sW}, v{T+1}
    v_lshl_add_u32 v{RA[0]}, v{T+1}, 6, v{RA[0]}""")
    for b in range(1, nb): a(f"v_add_u32 v{RA[b]}, {65536*b}, v{RA[0]}")
    a(f"v_mul_u32_u24 v{T}, {HST}, v0\nv_add_u32 v{T}, {HALO+2048}, v{T}")
    for q in range(4): a(f"v_mov_b32 v{T+4+q}, 0x3f803f80")
    a(f"s_mov_b64 exec, 0x3ff\nds_write_b128 v{T}, {V(T+4,4)}\ns_mov_b64 exec, -1")
    for i in range(80): a(f"v_mov_b32 v{ACC+i}, 0")
    a(f"""v_and_b32 v{T}, 31, v0
    v_lshlrev_b32 v{VS+2}, 4, v{T}
    v_lshrrev_b32 v{T+1}, 5, v0
    v_mul_u32_u24 v{T+1}, {QCS}, v{T+1}
    v_add_u32 v{VS}, v{VS+2}, v{T+1}
    v_add_u32 v{VS+1}, {2*QCS}, v{VS}
    s_lshl_b32 s55, s{sRT}, 11
    s_lshl_b32 s56, s{sCT}, 2
    s_add_u32 s56, s56, s{sW}
    s_mul_i32 s56, s56, {4*QCS}
    s_add_u32 s57, s56, s55
    s_add_u32 s57, s57, {W_QKV+256}
    s_add_u32 s55, s55, {W_ST1+256}
    s_add_u32 s56, s56, {W_QKV}
    s_mov_b32 s58, {W_ST1}""")
    def reads(s, j):
        p = (s * 4 + j) & 1; sl = s % NS; b = sl // 2; o = (sl & 1) * 32768
        F = [f"ds_read_b64_tr_b16 {V(AF[p]+2*e,2)}, v{RA[b]} offset:{o+16384+j*4096+e*1024}" for e in range(2)]
        F += [f"ds_read_b128 {V(BF[p]+4*t,4)}, v{RB[b]+j} offset:{o+t*4096}" for t in range(4)]
        F += [f"ds_read_b128 {V(BF[p]+16,4)}, v{RH+j} offset:{s*HST}"]
        return F
    a.wait(toks[0]); a("s_waitcnt lgkmcnt(0)\ns_barrier")
    for f in reads(0, 0): a(f)
    pend = []
    for s in range(10):
        for j in range(4):
            p = (s * 4 + j) & 1
            mf = [f"{MF} {V(ACC+16*t,16)}, {V(AF[p],4)}, {V(BF[p]+4*t,4)}, {V(ACC+16*t,16)}" for t in range(5)]
            fill = []
            if j == 3 and s < 9:
                def bar(s=s):
                    a.wait(toks[s + 1]); a("s_waitcnt lgkmcnt(0)\ns_barrier")
                fill.append(bar)
                if s + NS < 10: pend = dma_stage(s + NS)
            if j < 3: fill += reads(s, j + 1)
            elif s < 9: fill += reads(s + 1, 0)
            if s == 9 and j == 0:
                for t in range(4): fill.append(f"buffer_load_dwordx4 {V(ST+4*t,4)}, v{VS+2}, {rWS}, s55 offen offset:{512*t} sc1")
                fill.append(f"v_and_b32 v{T}, 0xf0, v{VS+2}")
                fill.append(f"buffer_load_dwordx4 {V(ST+16,4)}, v{T}, {rWS}, s58 offen sc1")
            k = min(3, len(pend)); fill += pend[:k]; pend = pend[k:]
            weave(a, mf, fill)
    for i in range(16): a(f"v_mov_b32 v{CS+i}, v{ACC+64+i}")
    for i in range(16): a(f"v_mov_b32_dpp v{CS+i}, v{ACC+64+i} row_bcast:15 row_mask:0xa bank_mask:0xf")
    for t in range(5):
        if t == 4:
            L = a.lab("Lh"); a(f"s_cmp_lg_u32 s{sRT}, 0\ns_cbranch_scc1 {L}"); a.cond_begin()
        pk = PK + 8 * (t & 1)
        for i in range(0, 16, 2):
            tt = T + (i & 6)
            a(f"v_pk_mul_f32 {V(tt,2)}, {V(CS+i,2)}, {V(ST+4*t,2)} op_sel:[0,1] op_sel_hi:[1,1]")
            a(f"v_pk_fma_f32 {V(tt,2)}, {V(ACC+16*t+i,2)}, {V(ST+4*t,2)}, {V(tt,2)} op_sel:[0,0,0] op_sel_hi:[1,0,1]")
            a(f"v_cvt_pk_bf16_f32 v{pk+i//2}, v{tt}, v{tt+1}")
        if t < 4:
            for o in range(2): a(f"buffer_store_dwordx4 {V(pk+4*o,4)}, v{VS+o}, {rWS}, s57 offen offset:{512*t}")
        else:
            for o in range(2): a(f"v_subrev_u32 v{VS+o}, 256, v{VS+o}")
            a("s_mov_b32 exec_lo, 0xffff0000\ns_mov_b32 exec_hi, 0xffff0000")
            for o in range(2): a(f"buffer_store_dwordx4 {V(pk+4*o,4)}, v{VS+o}, {rWS}, s56 offen")
            a("s_mov_b64 exec, -1")
            a.cond_end(); a(f"{L}:")

def st_attn(a, cfg):
    vr = Regs("v", 1, 256)
    Q = vr.get(12, 4); K = vr.get(96, 4); Vv = vr.get(96, 4); LG = vr.get(8, 4); T = vr.get(8, 4); O = vr.get(20, 4)
    VA, VHh, VD, LA, LH = [vr.get() for _ in range(5)]
    LD = cfg.get("ld", "")
    a(f"""s_lshr_b32 s40, s{sM}, 2
    s_and_b32 s41, s{sM}, 3
    s_lshl_b32 s41, s41, 2
    s_add_u32 s41, s41, s{sW}
    s_mul_i32 s42, s41, {5*QCS}
    s_lshl_b32 s43, s40, 9
    s_add_u32 s42, s42, s43
    s_lshl_b32 s44, s{sW}, 13
    v_lshlrev_b32 v{VD}, 4, v0
    s_mov_b32 exec_hi, 0xffff""")
    tk = None
    for c in range(10):
        ch = 80 + c if c < 5 else 155 + c
        a(f"s_add_u32 s45, s42, {W_QKV + ch*QCS}\ns_add_u32 m0, s44, {c*768}")
        tk = a(f"buffer_load_dwordx4 v{VD}, {rWS}, s45 offen {LD} lds")
    a(f"""s_mov_b64 exec, -1
    v_and_b32 v{T}, 15, v0
    v_lshrrev_b32 v{T+1}, 5, v0
    v_lshl_add_u32 v{T}, v{T+1}, 4, v{T}
    v_lshlrev_b32 v{T+1}, 4, v{T}
    v_bfe_u32 v{T+2}, v0, 4, 1
    v_mul_u32_u24 v{T+3}, {3*QCS}, v{T+2}
    v_add_u32 v{VA}, v{T+3}, v{T+1}
    v_lshl_add_u32 v{VHh}, v{T+2}, 3, v{T+1}
    s_add_u32 s45, s42, {W_QKV+256}
    s_add_u32 s46, s42, {W_QKV+256+QCS}
    s_add_u32 s47, s42, {W_QKV+256+2*QCS}
    buffer_load_dwordx4 {V(Q,4)}, v{VA}, {rWS}, s45 offen {LD}
    buffer_load_dwordx4 {V(Q+4,4)}, v{VA}, {rWS}, s46 offen {LD}
    buffer_load_dwordx2 {V(Q+8,2)}, v{VHh}, {rWS}, s47 offen {LD}
    v_mul_u32_u24 v{T+3}, {3*768}, v{T+2}
    v_add3_u32 v{LA}, v{T+3}, v{T+1}, s44
    v_add_u32 v{LH}, s44, v{VHh}
    v_mul_u32_u24 v{T+3}, {3*4096}, v{T+2}
    v_add_u32 v{VA}, v{T+3}, v{T+1}
    s_mul_i32 s45, s41, {5*4096}
    s_add_u32 s45, s45, s43
    s_add_u32 s45, s45, {W_O}
    s_add_u32 s46, s45, 4096
    s_add_u32 s47, s45, 8192
    s_or_b32 s48, s40, s{sG}""")
    a.wait(tk)
    def rd(base, w, sec):
        o = 32 + (7 - w) * 32 + sec * 3840
        a(f"ds_read_b128 {V(base+12*w,4)}, v{LA} offset:{o}\nds_read_b128 {V(base+12*w+4,4)}, v{LA} offset:{o+768}\nds_read_b64 {V(base+12*w+8,2)}, v{LH} offset:{o+1536}")
    for w in range(4): rd(K, w, 0)
    for w0 in range(0, 8, 2):
        if w0 + 4 < 8: rd(K, w0 + 4, 0); rd(K, w0 + 5, 0)
        else: rd(Vv, w0 - 4, 1); rd(Vv, w0 - 3, 1)
        for j in range(10):
            for w in (w0, w0 + 1):
                a(f"v_dot2_f32_bf16 v{LG+w}, v{Q+j}, v{K+12*w+j}, {0 if j == 0 else V(LG+w)}")
    for w in range(4, 8): rd(Vv, w, 1)
    L = a.lab("Lm"); a(f"s_cmp_lg_u32 s48, 0\ns_cbranch_scc1 {L}"); a.cond_begin()
    a(f"v_mov_b32 v{T+4}, {f2u(-1e30)}")
    for w in range(1, 8): a(f"v_cmp_le_u32 vcc, {2*w}, v{T}\nv_cndmask_b32 v{LG+w}, v{T+4}, v{LG+w}, vcc")
    a.cond_end(); a(f"{L}:")
    c = 20 ** -0.5 * 1.4426950408889634
    a(f"""v_max3_f32 v{T+4}, v{LG}, v{LG+1}, v{LG+2}
    v_max3_f32 v{T+5}, v{LG+3}, v{LG+4}, v{LG+5}
    v_max3_f32 v{T+4}, v{T+4}, v{LG+6}, v{LG+7}
    s_mov_b32 s49, {f2u(c)}
    v_max_f32 v{T+4}, v{T+4}, v{T+5}""")
    for w in range(8): a(f"v_sub_f32 v{LG+w}, v{LG+w}, v{T+4}")
    for w in range(8): a(f"v_mul_f32 v{LG+w}, s49, v{LG+w}")
    for w in range(8): a(f"v_exp_f32 v{LG+w}, v{LG+w}")
    a(f"""v_pk_add_f32 {V(T+4,2)}, {V(LG,2)}, {V(LG+2,2)}
    v_pk_add_f32 {V(T+6,2)}, {V(LG+4,2)}, {V(LG+6,2)}
    v_pk_add_f32 {V(T+4,2)}, {V(T+4,2)}, {V(T+6,2)}
    v_add_f32 v{T+4}, v{T+4}, v{T+5}
    v_rcp_f32 v{T+4}, v{T+4}
    s_mov_b32 s50, 0x05040100
    s_mov_b32 s51, 0x07060302""")
    for w in range(0, 8, 2): a(f"v_pk_mul_f32 {V(LG+w,2)}, {V(LG+w,2)}, {V(T+4,2)} op_sel_hi:[1,0]")
    for w in range(0, 8, 2): a(f"v_cvt_pk_bf16_f32 v{T+w//2}, v{LG+w}, v{LG+w+1}")
    for w in range(0, 8, 2):
        for j in range(10):
            a(f"v_perm_b32 v{K+2*j}, v{Vv+12*(w+1)+j}, v{Vv+12*w+j}, s50\nv_perm_b32 v{K+2*j+1}, v{Vv+12*(w+1)+j}, v{Vv+12*w+j}, s51")
        for j in range(20):
            a(f"v_dot2_f32_bf16 v{O+j}, v{K+j}, v{T+w//2}, {0 if w == 0 else V(O+j)}")
    for j in range(10): a(f"v_cvt_pk_bf16_f32 v{Q+j}, v{O+2*j}, v{O+2*j+1}")
    a(f"""buffer_store_dwordx4 {V(Q,4)}, v{VA}, {rWS}, s45 offen
    buffer_store_dwordx4 {V(Q+4,4)}, v{VA}, {rWS}, s46 offen
    buffer_store_dwordx2 {V(Q+8,2)}, v{VHh}, {rWS}, s47 offen""")

def stage_w64(a, srd, KS, AB, vr, rounds):
    VW = vr.get(4); RA = vr.get(2); T = vr.get(4)
    a(f"""v_lshrrev_b32 v{T}, 3, v0
    v_mul_u32_u24 v{T}, 1280, v{T}
    v_and_b32 v{T+1}, 7, v0
    v_bfe_u32 v{T+2}, v0, 4, 1
    v_lshlrev_b32 v{T+2}, 2, v{T+2}
    v_xor_b32 v{T+1}, v{T+1}, v{T+2}
    v_lshl_add_u32 v{VW}, v{T+1}, 4, v{T}""")
    for i in range(1, 4): a(f"v_add_u32 v{VW+i}, {i*(10240-1024)}, v{VW}")
    lane_tr(a, RA, T)
    a(f"""v_lshl_add_u32 v{RA}, v{T}, 7, v{RA}
    v_lshrrev_b32 v{T+1}, 1, v{T+1}
    v_lshl_add_u32 v{RA}, v{T+1}, 6, v{RA}
    s_mul_i32 s44, s{sW}, 40960
    v_add_u32 v{RA}, s44, v{RA}
    v_xor_b32 v{RA+1}, 64, v{RA}
    s_mul_i32 s45, s{sW}, {KS*16*1280}
    s_lshl_b32 s46, s40, 7
    s_add_u32 s45, s45, s46""")
    J0 = 0
    for n in rounds:
        tk = {}
        if J0: a("s_waitcnt lgkmcnt(0)")
        for i in range(2 * n):
            if i % 4 == 0: a(f"s_add_u32 s46, s45, {(J0*2+i)*10240}\ns_add_u32 m0, s44, {i*1024}")
            tk[i] = a(f"buffer_load_dwordx4 v{VW+i%4}, {srd}, s46 offen offset:{1024*(i%4)} lds")
        for J in range(n):
            a.wait(tk[2 * J + 1])
            for cb in range(2):
                for e in range(2):
                    a(f"ds_read_b64_tr_b16 {AG(AB+8*(J0+J)+4*cb+2*e,2)}, v{RA+cb} offset:{J*2048+e*512}")
        J0 += n

def st_ksplit(a, cfg, which):
    KS = 10 if which == 2 else 27
    src = W_O if which == 2 else W_H1
    LD = cfg.get("ld", "")
    vr = Regs("v", 1, 256)
    a(f"""s_mul_i32 s41, s{sM}, 205
    s_lshr_b32 s41, s41, 11
    s_mul_i32 s40, s41, 10
    s_sub_u32 s40, s{sM}, s40""")
    stage_w64(a, rWO if which == 2 else rW2, KS, 0, vr, [10] if which == 2 else [14, 13])
    a("s_waitcnt lgkmcnt(0)\ns_barrier")
    NB = 30
    ACC = [vr.get(32, 4) for _ in range(2)]; B = vr.get(4 * NB, 4)
    RS = vr.get(12, 4); RD = vr.get(32, 4)
    VB, VWr, VRd, VRd2, VRes, VOut, VSt = [vr.get() for _ in range(7)]; T = vr.get(4, 4)
    OST = 2048 + 128 + (128 if which == 4 else 0); WST = 4 * OST + 0; BUF = 4 * WST
    hp = 0 if which == 2 else 64
    if which == 4: OST = 2048 + 128 + 256; WST = 4 * OST; BUF = 4 * WST
    a(f"""v_and_b32 v{T}, 31, v0
    v_lshrrev_b32 v{T+1}, 5, v0
    v_lshlrev_b32 v{T}, 4, v{T}
    v_lshl_add_u32 v{VB}, v{T+1}, 12, v{T}
    v_mul_u32_u24 v{T+1}, {512+hp}, v{T+1}
    s_mul_i32 s42, s{sW}, {WST}
    v_add3_u32 v{VWr}, v{T}, v{T+1}, s42
    s_mul_i32 s42, s41, {96*16}
    s_mul_i32 s43, s{sW}, {KS*8192}
    s_add_u32 s43, s43, s42
    s_add_u32 s43, s43, {src}""")
    if which == 2: a(f"v_and_b32 v{T}, 7, v0\nv_lshrrev_b32 v{T+1}, 3, v0")
    else: a(f"v_lshrrev_b32 v{T}, 3, v0\nv_and_b32 v{T+1}, 7, v0")
    JS = 1024 + 2 * hp
    a(f"""s_lshl_b32 s44, s{sW}, 3
    v_add_u32 v{T}, s44, v{T}
    v_lshrrev_b32 v{T+2}, 1, v{T+1}
    v_mul_u32_u24 v{T+2}, {OST}, v{T+2}
    v_and_b32 v{T+3}, 1, v{T+1}
    v_mul_u32_u24 v{T+3}, {512+hp}, v{T+3}
    v_add_u32 v{T+2}, v{T+2}, v{T+3}
    v_lshl_add_u32 v{VRd}, v{T}, 4, v{T+2}
    v_add_u32 v{VRd2}, {BUF}, v{VRd}
    v_mul_u32_u24 v{T+2}, 1280, v{T}
    v_lshl_add_u32 v{VOut if which == 4 else VRes}, v{T+1}, 4, v{T+2}
    v_lshlrev_b32 v{T+2}, 4, v{T}
    v_lshl_add_u32 v{VRes if which == 4 else VOut}, v{T+1}, 12, v{T+2}
    v_lshlrev_b32 v{VSt}, 3, v{T}
    s_lshl_b32 s44, s{sG}, 8
    s_mul_i32 s45, s41, 96
    s_add_u32 s44, s44, s45
    s_mul_i32 s44, s44, 1280
    s_lshl_b32 s45, s40, 7
    s_add_u32 s44, s44, s45
    s_add_u32 s45, s44, 40960
    s_add_u32 s46, s44, 81920
    s_lshl_b32 s47, s40, 15
    s_add_u32 s47, s47, s42
    s_add_u32 s47, s47, {W_H}
    s_lshl_b32 s48, s40, 11
    s_lshr_b32 s49, s42, 1
    s_add_u32 s48, s48, s49
    s_add_u32 s48, s48, {W_HS}
    s_mov_b32 s50, 0x3f803f80
    s_cmp_eq_u32 s41, 2
    s_cselect_b32 s46, {BIG}, s46
    s_cselect_b32 s51, {BIG}, s43
    s_cselect_b32 s52, {BIG}, s47
    s_cselect_b32 s53, {BIG}, s48""")
    for tb in range(3):
        if which == 2: a(f"buffer_load_dwordx4 {V(RS+4*tb,4)}, v{VRes}, {rX}, s{44+tb} offen")
        else: a(f"buffer_load_dwordx4 {V(RS+4*tb,4)}, v{VRes}, {rWS}, s{47 if tb < 2 else 52} offen offset:{512*tb} {LD}")
    seq = [(tb, J) for tb in range(3) for J in range(KS)]
    def ld(i):
        tb, J = seq[i]
        return f"s_add_u32 s54, s{43 if tb < 2 else 51}, {J*8192}\nbuffer_load_dwordx4 {V(B+4*(i%NB),4)}, v{VB}, {rWS}, s54 offen offset:{512*tb} {LD}"
    for i in range(min(NB, len(seq))): a(ld(i))
    def red_write(tb):
        bo = (tb & 1) * BUF
        return [f"ds_write_b128 v{VWr}, {V(ACC[tb&1]+8*o+4*j,4)} offset:{bo+o*OST+j*JS}" for o in range(4) for j in range(2)]
    def red_fin(tb):
        bo = (tb & 1) * BUF
        F = ["s_waitcnt lgkmcnt(0)\ns_barrier"]
        F += [f"ds_read_b128 {V(RD+8*s+4*j,4)}, v{VRd2 if tb & 1 else VRd} offset:{s*WST+j*JS}" for s in range(4) for j in range(2)]
        for i in range(8): F.append(f"v_add_f32 v{RD+i}, v{RD+i}, v{RD+8+i}")
        for i in range(8): F.append(f"v_add_f32 v{RD+16+i}, v{RD+16+i}, v{RD+24+i}")
        for i in range(4):
            F.append(f"v_lshlrev_b32 v{RD+8+2*i}, 16, v{RS+4*tb+i}")
            F.append(f"v_and_b32 v{RD+9+2*i}, 0xffff0000, v{RS+4*tb+i}")
        for i in range(8): F.append(f"v_add_f32 v{RD+i}, v{RD+i}, v{RD+16+i}")
        for i in range(8): F.append(f"v_add_f32 v{RD+i}, v{RD+i}, v{RD+8+i}")
        for i in range(4): F.append(f"v_cvt_pk_bf16_f32 v{RS+4*tb+i}, v{RD+2*i}, v{RD+2*i+1}")
        if which == 4:
            F.append(f"buffer_store_dwordx4 {V(RS+4*tb,4)}, v{VOut}, {rOUT}, s{44+tb} offen")
        else:
            F.append(f"buffer_store_dwordx4 {V(RS+4*tb,4)}, v{VOut}, {rWS}, s{47 if tb < 2 else 52} offen offset:{512*tb}")
            for i in range(4):
                F.append(f"v_dot2_f32_bf16 v{T}, v{RS+4*tb+i}, s50, {0 if i == 0 else V(T)}")
                F.append(f"v_dot2_f32_bf16 v{T+1}, v{RS+4*tb+i}, v{RS+4*tb+i}, {0 if i == 0 else V(T+1)}")
            for q in range(2): F.append(f"v_add_f32_dpp v{T+q}, v{T+q}, v{T+q} row_ror:8 row_mask:0xf bank_mask:0xf")
            for pl in ("v_permlane16_swap_b32", "v_permlane32_swap_b32"):
                for q in range(2): F.append(f"v_mov_b32 v{T+2+q}, v{T+q}")
                for q in range(2): F.append(f"{pl} v{T+q}, v{T+2+q}")
                for q in range(2): F.append(f"v_add_f32 v{T+q}, v{T+q}, v{T+2+q}")
            F.append(f"s_mov_b64 exec, 0xff\nbuffer_store_dwordx2 {V(T,2)}, v{VSt}, {rWS}, s{48 if tb < 2 else 53} offen offset:{256*tb}\ns_mov_b64 exec, -1")
        return F
    nl = min(NB, len(seq))
    for tb in range(3):
        mf = []; fill = []
        if tb: fill = red_write(tb - 1) + red_fin(tb - 1)
        per = -(-len(fill) // (2 * KS - 2)) if fill else 0
        k = 0
        for J in range(KS):
            i = tb * KS + J
            for cb in range(2):
                c = V(ACC[tb & 1] + 16 * cb, 16)
                a(f"{MF} {c}, {AG(8*J+4*cb,4)}, {V(B+4*(i%NB),4)}, {0 if J == 0 else c}")
                if J + cb > 0:
                    for f in fill[k:k + per]: a(f)
                    k += per
            if nl < len(seq): a(ld(nl)); nl += 1
        for f in fill[k:]: a(f)
    for f in red_write(2) + red_fin(2): a(f)

def st3(a, cfg):
    LD = cfg.get("ld", "")
    vr = Regs("v", 1, 256)
    VW = vr.get(4); RA = vr.get(); T = vr.get(8, 4)
    a(f"""s_cmp_ge_u32 s{sM}, 14
    s_cselect_b32 s41, 1, 0
    s_mul_i32 s40, s41, 14
    s_sub_u32 s40, s{sM}, s40
    v_lshrrev_b32 v{T}, 2, v0
    v_mul_u32_u24 v{T}, 3456, v{T}
    v_and_b32 v{T+1}, 3, v0
    v_lshl_add_u32 v{VW}, v{T+1}, 4, v{T}""")
    for i in range(1, 4): a(f"v_add_u32 v{VW+i}, {i*(16*3456-1024)}, v{VW}")
    lane_tr(a, RA, T)
    a(f"""v_lshl_add_u32 v{RA}, v{T}, 6, v{RA}
    s_mul_i32 s44, s{sW}, 40960
    v_add_u32 v{RA}, s44, v{RA}
    s_lshl_b32 s45, s40, 8
    s_lshl_b32 s46, s{sW}, 6
    s_add_u32 s45, s45, s46""")
    tk = {}
    for J in range(40):
        if J % 4 == 0: a(f"s_add_u32 s46, s45, {J*16*3456}\ns_add_u32 m0, s44, {J*1024}")
        tk[J] = a(f"buffer_load_dwordx4 v{VW+J%4}, {rW1}, s46 offen offset:{1024*(J%4)} lds")
    CS = vr.get(16, 4); ONE = vr.get(4, 4)
    for q in range(4): a(f"v_mov_b32 v{ONE+q}, 0x3f803f80")
    for J in range(40):
        a.wait(tk[J])
        for e in range(2): a(f"ds_read_b64_tr_b16 {AG(4*J+2*e,2)}, v{RA} offset:{J*1024+e*256}")
    for J in range(40): a(f"{MF} {V(CS,16)}, {AG(4*J,4)}, {V(ONE,4)}, {0 if J == 0 else V(CS,16)}")
    a("s_barrier")
    HS = vr.get(10 * 4, 4); STT = vr.get(12, 4)
    VD = vr.get(4); VP = vr.get(); VS = vr.get(2); RB = vr.get(3)
    a(f"""v_and_b32 v{T}, 31, v0
    v_lshrrev_b32 v{T+1}, 5, v0
    v_mul_u32_u24 v{T+2}, {5*2048}, v{T+1}
    v_lshl_add_u32 v{VP}, v{T}, 3, v{T+2}
    v_lshlrev_b32 v{T}, 4, v{T}
    v_lshl_add_u32 v{VD}, v{T+1}, 12, v{T}
    v_mov_b32 v{VS}, v{VD}
    v_add_u32 v{VS+1}, 8192, v{VD}
    v_lshlrev_b32 v{RB}, 4, v0
    v_add_u32 v{RB+1}, 0x10000, v{RB}
    v_add_u32 v{RB+2}, 0x20000, v{RB}
    s_lshl_b32 s42, s41, 11
    s_mul_i32 s43, s{sW}, {10*8192}
    s_add_u32 s43, s43, s42
    s_add_u32 s43, s43, {W_H}
    s_mul_i32 s44, s{sW}, 10240
    s_lshl_b32 s45, s41, 10
    s_add_u32 s45, s45, {W_HS}
    s_lshl_b32 s47, s40, 2
    s_add_u32 s47, s47, s{sW}
    s_cmp_ge_u32 s47, 54
    s_cselect_b32 s48, {BIG}, 0
    s_lshl_b32 s47, s47, 14
    s_add_u32 s47, s47, s42
    s_add_u32 s47, s47, {W_H1}
    s_or_b32 s47, s47, s48""")
    for i in range(1, 4): a(f"v_add_u32 v{VD+i}, {i*(8192-1024)}, v{VD}")
    tkb = {}
    def dma_blk(b):
        F = []
        for i in range(10):
            def f(i=i):
                if i % 4 == 0: a(f"s_add_u32 s46, s43, {i*8192+b*512}\ns_add_u32 m0, s44, {b*40960+i*1024}")
                tkb[b] = a(f"buffer_load_dwordx4 v{VD+i%4}, {rWS}, s46 offen offset:{1024*(i%4)} {LD} lds")
            F.append(f)
        return F
    for f in dma_blk(0): f()
    for b in range(4):
        for i in range(5):
            a(f"s_add_u32 s46, s45, {i*2048}\nbuffer_load_dwordx2 {V(HS+10*b+2*i,2)}, v{VP}, {rWS}, s46 offen offset:{256*b} {LD}")
    for b in range(1, 4):
        for f in dma_blk(b): f()
    for b in range(4):
        h = HS + 10 * b
        a(f"""v_pk_add_f32 {V(h,2)}, {V(h,2)}, {V(h+2,2)}
        v_pk_add_f32 {V(h+4,2)}, {V(h+4,2)}, {V(h+6,2)}
        v_pk_add_f32 {V(h,2)}, {V(h,2)}, {V(h+8,2)}
        v_pk_add_f32 {V(h,2)}, {V(h,2)}, {V(h+4,2)}
        v_mov_b32 v{h+2}, v{h}
        v_mov_b32 v{h+3}, v{h+1}
        v_permlane32_swap_b32 v{h}, v{h+2}
        v_permlane32_swap_b32 v{h+1}, v{h+3}
        v_pk_add_f32 {V(h,2)}, {V(h,2)}, {V(h+2,2)}
        v_mul_f32 v{STT+3*b}, {f2u(-1/640)}, v{h}
        v_mul_f32 v{h+1}, {f2u(1/640)}, v{h+1}
        v_fma_f32 v{h+1}, -v{STT+3*b}, v{STT+3*b}, v{h+1}
        v_max_f32 v{h+1}, 0, v{h+1}
        v_add_f32 v{h+1}, {f2u(1e-5)}, v{h+1}
        v_rsq_f32 v{h}, v{h+1}
        v_mul_f32 v{STT+3*b+2}, v{h+1}, v{h}
        v_mul_f32 v{STT+3*b+1}, {f2u(-1.4426950408889634)}, v{h}""")
    ACC = [vr.get(16, 4) for _ in range(2)]; NBF = 8; BF = vr.get(4 * NBF, 4); E = vr.get(16, 4); PK = vr.get(8, 4)
    def rd(i):
        off = i * 1024
        return f"ds_read_b128 {V(BF+4*(i%NBF),4)}, v{RB+off//65536} offset:{off%65536}"
    def epi(b):
        ac = ACC[b & 1]; F = []
        for h in range(0, 16, 4):
            r = range(h, h + 4)
            F += [f"v_fma_f32 v{ac+i}, v{STT+3*b}, v{CS+i}, v{ac+i}" for i in r]
            F += [f"v_mul_f32 v{E+i}, v{STT+3*b+1}, v{ac+i}" for i in r]
            F += [f"v_exp_f32 v{E+i}, v{E+i}" for i in r]
            F += [f"v_fma_f32 v{E+i}, v{E+i}, v{STT+3*b+2}, v{STT+3*b+2}" for i in r]
            F += [f"v_rcp_f32 v{E+i}, v{E+i}" for i in r]
            F += [f"v_mul_f32 v{E+i}, v{E+i}, v{ac+i}" for i in r]
            F += [f"v_cvt_pk_bf16_f32 v{PK+i//2}, v{E+i}, v{E+i+1}" for i in (h, h + 2)]
            if h & 4: F.append(f"buffer_store_dwordx4 {V(PK+4*(h//8),4)}, v{VS+h//8}, {rWS}, s47 offen offset:{512*b}")
        return F
    PD = 6
    a.wait(tkb[0]); a("s_barrier")
    for i in range(PD): a(rd(i))
    for b in range(4):
        fill = epi(b - 1) if b else []
        k = 0
        for J in range(40):
            i = b * 40 + J
            c = V(ACC[b & 1], 16)
            a(f"{MF} {c}, {AG(4*J,4)}, {V(BF+4*(i%NBF),4)}, {0 if J == 0 else c}")
            if J == 40 - PD and b < 3: a.wait(tkb[b + 1]); a("s_barrier")
            if i + PD < 160: a(rd(i + PD))
            if J >= 2:
                for f in fill[k:k + 3]: a(f)
                k += 3
        assert k >= len(fill)
    for f in epi(3): a(f)

def kd(name, vg=512, acc=256):
    return f""".section .rodata,"a"
.p2align 6
.amdhsa_kernel {name}
  .amdhsa_next_free_vgpr {vg}
  .amdhsa_next_free_sgpr 96
  .amdhsa_accum_offset {acc}
  .amdhsa_group_segment_fixed_size 0
  .amdhsa_kernarg_size 72
  .amdhsa_user_sgpr_count 2
  .amdhsa_user_sgpr_kernarg_segment_ptr 1
  .amdhsa_system_sgpr_workgroup_id_x 1
.end_amdhsa_kernel
"""

def header():
    ref = open(f"cdna_kernels/{NAME}.s.ref").read().split("\n")
    return "\n".join(l for l in ref if l.startswith(";") and "@launch" not in l and "Override" not in l and "grid=ceil" not in l) + "\n"

def gen_M(cfg):
    a = Asm()
    ks = [("k0", lambda: st0(a), 30, 32), ("k1", lambda: st1(a, cfg), 0, 30), ("k2", lambda: st_attn(a, cfg), 0, 32),
          ("k3", lambda: st_ksplit(a, cfg, 2), 0, 30), ("k4", lambda: st3(a, cfg), 0, 28), (NAME, lambda: st_ksplit(a, cfg, 4), 0, 30)]
    hdr = header()
    for n, *_ in ks: hdr += f"; @launch kernel={n}_kernel grid=(256,1,1) block=(256,1,1) lds=163840\n"
    hdr += '.amdgcn_target "amdgcn-amd-amdhsa--gfx950"\n.text\n'
    for n, body, lo, hi in ks:
        a.reset()
        a(f".globl {n}_kernel\n.p2align 8\n.type {n}_kernel,@function\n{n}_kernel:")
        end = a.lab("Lend")
        prologue(a, end)
        if lo: a(f"s_cmp_lt_u32 s{sM}, {lo}\ns_cbranch_scc1 {end}")
        if hi < 32: a(f"s_cmp_ge_u32 s{sM}, {hi}\ns_cbranch_scc1 {end}")
        body()
        a(f"{end}:\ns_endpgm")
    return hdr + a.finalize() + "".join(kd(n + "_kernel") for n, *_ in ks)

if __name__ == "__main__":
    out = sys.argv[1] if len(sys.argv) > 1 else f"cdna_kernels/{NAME}.s"
    cfg = eval(sys.argv[2]) if len(sys.argv) > 2 else {}
    open(out, "w").write(gen_M(cfg))
```

```python
import sys, struct
sys.path.insert(0, "tools")
from asmfw import *

NAME = "sequential_preLN__sliding_local_dilated__dense_activation_silu__prompt"
f2u = lambda x: hex(struct.unpack("<I", struct.pack("<f", x))[0])

WS_GROUP = 4 << 20
QCS = 272 * 16
W_QKV = 0
W_ST1 = 0x100000
W_HS = 0x102000
W_FLG = 0x108000
W_O = 0x110000
W_H = 0x160000
W_H1 = 0x1B0000
BIG = 0x7F000000

sG, sM, sW, sTAG = 4, 5, 6, 7
rX, rWQ, rWO, rW1, rW2, rOUT, rWS, rDBG = [S(8 + 4 * i, 4) for i in range(8)]
MF = "v_mfma_f32_32x32x16_bf16"

def weave(a, mfmas, fill, first=0):
    n = len(mfmas); k = 0
    for i, m in enumerate(mfmas):
        a(m)
        if i < first: continue
        tgt = (len(fill) * (i + 1 - first) + (n - first) - 1) // (n - first)
        while k < tgt:
            f = fill[k]; k += 1
            f() if callable(f) else a(f)
    while k < len(fill):
        f = fill[k]; k += 1
        f() if callable(f) else a(f)

def prologue(a, end):
    a(f"""s_cmp_ge_u32 s2, 256
    s_cbranch_scc1 {end}
    s_load_dwordx4 s[40:43], s[0:1], 0
    s_load_dwordx2 s[44:45], s[0:1], 16
    s_load_dwordx4 s[48:51], s[0:1], 32
    s_load_dwordx4 s[52:55], s[0:1], 48
    s_load_dwordx2 s[56:57], s[0:1], 64
    v_lshrrev_b32 v1, 6, v0
    v_and_b32 v0, 63, v0
    v_readfirstlane_b32 s{sW}, v1
    s_and_b32 s{sG}, s2, 7
    s_lshr_b32 s{sM}, s2, 3
    s_mov_b32 s{sTAG}, 1
    s_lshl_b32 s3, s{sG}, 22""")
    for i, (src, n) in enumerate([(40, 2048 * 1280), (42, 640 * 3840), (44, 640 * 1280), (48, 640 * 3456), (50, 1728 * 1280), (52, 2048 * 1280), (56, WS_GROUP), (54, 256)]):
        d = 8 + 4 * i
        a(f"s_mov_b32 s{d+2}, {n}\ns_mov_b32 s{d+3}, 0x20000")
    for i, (src, n) in enumerate([(40, 0), (42, 0), (44, 0), (48, 0), (50, 0), (52, 0), (56, 0), (54, 0)]):
        d = 8 + 4 * i
        if i == 6: a(f"s_add_u32 s{d}, s{src}, s3\ns_addc_u32 s{d+1}, s{src+1}, 0")
        else: a(f"s_mov_b32 s{d}, s{src}\ns_mov_b32 s{d+1}, s{src+1}")

def lane_tr(a, v, t):
    a(f"""v_and_b32 v{v}, 16, v0
    v_lshlrev_b32 v{v}, 1, v{v}
    v_and_b32 v{t}, 1, v0
    v_lshl_or_b32 v{v}, v{t}, 4, v{v}
    v_and_b32 v{t}, 2, v0
    v_lshl_or_b32 v{v}, v{t}, 2, v{v}
    v_lshrrev_b32 v{t}, 5, v0
    v_bfe_u32 v{t+1}, v0, 2, 2
    v_lshl_or_b32 v{t}, v{t}, 3, v{t+1}""")

def st0(a):
    vr = Regs("v", 1, 254)
    vo = vr.get(); vs = vr.get(); X = vr.get(200, 4); T = vr.get(8, 4)
    a(f"""v_lshrrev_b32 v{vs}, 3, v0
    v_mul_u32_u24 v{vo}, 1280, v{vs}
    v_and_b32 v{T}, 7, v0
    v_lshl_add_u32 v{vo}, v{T}, 4, v{vo}
    v_lshlrev_b32 v{vs}, 4, v{vs}
    s_sub_u32 s40, s{sM}, 30
    s_mul_i32 s40, s40, 136
    s_lshl_b32 s41, s{sW}, 3
    s_add_u32 s40, s40, s41
    s_lshl_b32 s41, s{sG}, 8
    s_add_u32 s41, s41, s40
    s_sub_u32 s41, s41, 16
    s_mov_b32 s48, 0x3f803f80""")
    for i in range(5):
        a(f"s_add_u32 s42, s41, {32*i}\ns_mul_i32 s{43+i}, s42, 1280\ns_cmp_lt_i32 s42, 0\ns_cselect_b32 s{43+i}, {BIG}, s{43+i}")
        if i == 4: a(f"s_cmp_lg_u32 s{sW}, 0\ns_cselect_b32 s{43+i}, {BIG}, s{43+i}")
        for j in range(10):
            a(f"buffer_load_dwordx4 {V(X+40*i+4*j,4)}, v{vo}, {rX}, s{43+i} offen offset:{128*j}")
    a(f"s_lshl_b32 s40, s40, 4\ns_add_u32 s40, s40, {W_ST1}")
    for i in range(5):
        a(f"v_mov_b32 v{T}, 0\nv_mov_b32 v{T+1}, 0")
        for j in range(40):
            a(f"v_dot2_f32_bf16 v{T}, v{X+40*i+j}, s48, v{T}\nv_dot2_f32_bf16 v{T+1}, v{X+40*i+j}, v{X+40*i+j}, v{T+1}")
        for d in ("quad_perm:[1,0,3,2]", "quad_perm:[2,3,0,1]", "row_half_mirror"):
            for q in (0, 1): a(f"v_add_f32_dpp v{T+q}, v{T+q}, v{T+q} {d} row_mask:0xf bank_mask:0xf")
        a(f"""v_mul_f32 v{T}, {f2u(1/640)}, v{T}
        v_mul_f32 v{T+2}, v{T}, v{T}
        v_mul_f32 v{T+1}, {f2u(1/640)}, v{T+1}
        v_sub_f32 v{T+1}, v{T+1}, v{T+2}
        v_max_f32 v{T+1}, 0, v{T+1}
        v_add_f32 v{T+1}, {f2u(1e-5)}, v{T+1}
        v_rsq_f32 v{T+4}, v{T+1}
        v_mov_b32 v{T+6}, s{sTAG}
        v_mov_b32 v{T+7}, s{sTAG}
        v_mul_f32 v{T+5}, v{T}, v{T+4}
        v_sub_f32 v{T+5}, 0, v{T+5}""")
        if i == 4: a(f"s_cmp_lg_u32 s{sW}, 0\ns_cselect_b32 s40, {BIG}, s40")
        a(f"s_mov_b32 exec_lo, 0x01010101\ns_mov_b32 exec_hi, 0x01010101")
        a(f"buffer_store_dwordx4 {V(T+4,4)}, v{vs}, {rWS}, s40 offen offset:{512*i} sc1")
        a("s_mov_b64 exec, -1")

def st1(a, cfg):
    NS = cfg.get("nslot", 4); HALO = NS * 32768; HST = 2176
    vr = Regs("v", 1, 254)
    ACC = vr.get(80, 4)
    BF = [vr.get(20, 4) for _ in range(2)]; AF = [vr.get(4, 4) for _ in range(2)]
    VX = vr.get(4); VW = vr.get(4); VH = vr.get()
    nb = (NS + 1) // 2
    RB = [vr.get(4) for _ in range(nb)]; RA = [vr.get() for _ in range(nb)]; RH = vr.get(4)
    T = vr.get(8, 4); CS = vr.get(16, 4); ST = vr.get(20, 4); PK = vr.get(16, 4); VS = vr.get(3)
    sCT, sRT, sXO, sWO_, sHO, sKC, sM0, sT = 40, 41, 42, 43, 44, 45, 46, 47
    a(f"""s_lshr_b32 s{sCT}, s{sM}, 1
    s_and_b32 s{sRT}, s{sM}, 1""")
    a(f"""v_lshrrev_b32 v{T}, 3, v0
    s_lshl_b32 s{sT}, s{sW}, 5
    v_add_u32 v{T+1}, s{sT}, v{T}
    v_mul_u32_u24 v{T+1}, 1280, v{T+1}
    v_lshrrev_b32 v{T+2}, 4, v0
    v_and_b32 v{T+3}, 7, v0
    v_xor_b32 v{T+3}, v{T+3}, v{T+2}
    v_lshl_add_u32 v{VX}, v{T+3}, 4, v{T+1}
    v_xor_b32 v{T+4}, 64, v{VX}
    v_add_u32 v{VX+1}, {10240-1024}, v{T+4}
    v_add_u32 v{VX+2}, {20480-2048}, v{VX}
    v_add_u32 v{VX+3}, {30720-3072}, v{T+4}
    s_and_b32 s{sT}, s{sW}, 1
    s_lshl_b32 s{sT+1}, s{sT}, 3
    v_add_u32 v{T+1}, s{sT+1}, v{T}
    v_mul_u32_u24 v{T+1}, 1280, v{T+1}
    v_lshl_add_u32 v{VH}, v{T+3}, 4, v{T+1}
    s_lshl_b32 s{sT}, s{sT}, 6
    v_xor_b32 v{VH}, s{sT}, v{VH}
    s_lshl_b32 s{sT}, s{sW}, 4
    v_add_u32 v{T+1}, s{sT}, v{T+2}
    v_mul_u32_u24 v{T+1}, 3840, v{T+1}
    v_and_b32 v{T+3}, 15, v0
    v_lshlrev_b32 v{T+2}, 2, v{T+2}
    v_xor_b32 v{T+3}, v{T+3}, v{T+2}
    v_lshl_add_u32 v{VW}, v{T+3}, 4, v{T+1}""")
    for i in range(1, 4): a(f"v_add_u32 v{VW+i}, {i*(4*3840-1024)}, v{VW}")
    rot = cfg.get("rot", (0, 0))
    a(f"""s_lshl_b32 s{sXO}, s{sG}, 8
    s_lshl_b32 s{sT}, s{sRT}, 7
    s_add_u32 s{sXO}, s{sXO}, s{sT}
    s_mul_i32 s{sXO}, s{sXO}, 1280
    s_sub_u32 s{sHO}, s{sXO}, {16*1280}
    s_cmp_eq_u32 s{sG}, 0
    s_cselect_b32 s{sHO}, {BIG}, s{sHO}
    s_lshl_b32 s{sWO_}, s{sCT}, 8
    s_mul_i32 s{sKC}, s{sCT}, {rot[0]}
    s_mul_i32 s{sT}, s{sRT}, {rot[1]}
    s_add_u32 s{sKC}, s{sKC}, s{sT}
    s_mul_i32 s{sT}, s{sKC}, 205
    s_lshr_b32 s{sT}, s{sT}, 11
    s_mul_i32 s{sT}, s{sT}, 10
    s_sub_u32 s{sKC}, s{sKC}, s{sT}
    s_lshl_b32 s{sM0}, s{sW}, 12
    s_lshl_b32 s49, s{sW}, 10
    s_lshr_b32 s{sT}, s{sW}, 1
    s_or_b32 s50, s{sT}, s{sRT}""")
    toks = {}
    def dma_stage(s):
        sl = (s % NS) * 32768
        F = []
        def f0():
            a(f"s_lshl_b32 s51, s{sKC}, 7\ns_add_u32 s52, s51, s{sXO}\ns_add_u32 m0, s{sM0}, {sl}")
            a(f"buffer_load_dwordx4 v{VX}, {rX}, s52 offen lds")
        F.append(f0)
        for i in range(1, 4): F.append(f"buffer_load_dwordx4 v{VX+i}, {rX}, s52 offen offset:{1024*i} lds")
        def fh():
            L = a.lab("Lh")
            a(f"s_cmp_lg_u32 s50, 0\ns_cbranch_scc1 {L}"); a.cond_begin()
            a(f"s_add_u32 s53, s51, s{sHO}\ns_add_u32 m0, s49, {HALO + s*HST}")
            a(f"buffer_load_dwordx4 v{VH}, {rX}, s53 offen lds")
            a.cond_end(); a(f"{L}:")
        F.append(fh)
        def f1():
            a(f"s_mul_i32 s54, s{sKC}, {64*3840}\ns_add_u32 s54, s54, s{sWO_}\ns_add_u32 m0, s{sM0}, {sl+16384}")
            a(f"buffer_load_dwordx4 v{VW}, {rWQ}, s54 offen lds")
        F.append(f1)
        for i in range(1, 3): F.append(f"buffer_load_dwordx4 v{VW+i}, {rWQ}, s54 offen offset:{1024*i} lds")
        def f2():
            toks[s] = a(f"buffer_load_dwordx4 v{VW+3}, {rWQ}, s54 offen offset:3072 lds")
            a(f"s_add_u32 s{sKC}, s{sKC}, 1\ns_cmp_eq_u32 s{sKC}, 10\ns_cselect_b32 s{sKC}, 0, s{sKC}")
        F.append(f2)
        return F
    for s in range(NS):
        for f in dma_stage(s): f() if callable(f) else a(f)
    if cfg.get("P"): sync_post(a)
    a(f"""v_and_b32 v{T}, 31, v0
    v_lshrrev_b32 v{T+1}, 5, v0
    v_bfe_u32 v{T+2}, v0, 1, 3
    v_xor_b32 v{T+1}, v{T+1}, v{T+2}
    v_lshlrev_b32 v{T+1}, 4, v{T+1}
    v_lshl_add_u32 v{RB[0]}, v{T}, 7, v{T+1}""")
    for j in range(1, 4): a(f"v_xor_b32 v{RB[0]+j}, {32*j}, v{RB[0]}")
    a(f"v_cmp_gt_u32 vcc, 16, v{T}\nv_mov_b32 v{T+3}, {HALO+2048}")
    for j in range(4):
        a(f"v_add_u32 v{RH+j}, {HALO-2048}, v{RB[0]+j}\nv_cndmask_b32 v{RH+j}, v{RH+j}, v{T+3}, vcc")
    for b in range(1, nb):
        for j in range(4): a(f"v_add_u32 v{RB[b]+j}, {65536*b}, v{RB[0]+j}")
    lane_tr(a, RA[0], T)
    a(f"""v_lshl_add_u32 v{RA[0]}, v{T}, 8, v{RA[0]}
    v_xor_b32 v{T+1}, s{sW}, v{T+1}
    v_lshl_add_u32 v{RA[0]}, v{T+1}, 6, v{RA[0]}""")
    for b in range(1, nb): a(f"v_add_u32 v{RA[b]}, {65536*b}, v{RA[0]}")
    a(f"v_mul_u32_u24 v{T}, {HST}, v0\nv_add_u32 v{T}, {HALO+2048}, v{T}")
    for q in range(4): a(f"v_mov_b32 v{T+4+q}, 0x3f803f80")
    a(f"s_mov_b64 exec, 0x3ff\nds_write_b128 v{T}, {V(T+4,4)}\ns_mov_b64 exec, -1")
    for i in range(80): a(f"v_mov_b32 v{ACC+i}, 0")
    a(f"""v_and_b32 v{T}, 31, v0
    v_lshlrev_b32 v{VS+2}, 4, v{T}
    v_lshrrev_b32 v{T+1}, 5, v0
    v_mul_u32_u24 v{T+1}, {QCS}, v{T+1}
    v_add_u32 v{VS}, v{VS+2}, v{T+1}
    v_add_u32 v{VS+1}, {2*QCS}, v{VS}
    s_lshl_b32 s55, s{sRT}, 11
    s_lshl_b32 s56, s{sCT}, 2
    s_add_u32 s56, s56, s{sW}
    s_mul_i32 s56, s56, {4*QCS}
    s_add_u32 s57, s56, s55
    s_add_u32 s57, s57, {W_QKV+256}
    s_add_u32 s55, s55, {W_ST1+256}
    s_add_u32 s56, s56, {W_QKV}
    s_mov_b32 s58, {W_ST1}""")
    def reads(s, j):
        p = (s * 4 + j) & 1; sl = s % NS; b = sl // 2; o = (sl & 1) * 32768
        F = [f"ds_read_b64_tr_b16 {V(AF[p]+2*e,2)}, v{RA[b]} offset:{o+16384+j*4096+e*1024}" for e in range(2)]
        F += [f"ds_read_b128 {V(BF[p]+4*t,4)}, v{RB[b]+j} offset:{o+t*4096}" for t in range(4)]
        F += [f"ds_read_b128 {V(BF[p]+16,4)}, v{RH+j} offset:{s*HST}"]
        return F
    ts = cfg["ts"] if cfg.get("P") else (lambda n: None)
    ts("s1.pre")
    a.wait(toks[0]); a("s_waitcnt lgkmcnt(0)\ns_barrier")
    ts("s1.bar0")
    for f in reads(0, 0): a(f)
    pend = []
    for s in range(10):
        for j in range(4):
            p = (s * 4 + j) & 1
            mf = [f"{MF} {V(ACC+16*t,16)}, {V(AF[p],4)}, {V(BF[p]+4*t,4)}, {V(ACC+16*t,16)}" for t in range(5)]
            fill = []
            if j == 3 and s < 9:
                def bar(s=s):
                    a.wait(toks[s + 1]); a("s_waitcnt lgkmcnt(0)\ns_barrier")
                fill.append(bar)
                if s + NS < 10: pend = dma_stage(s + NS)
            if j < 3: fill += reads(s, j + 1)
            elif s < 9: fill += reads(s + 1, 0)
            if s == 9 and j == 0:
                for t in range(4): fill.append(f"buffer_load_dwordx4 {V(ST+4*t,4)}, v{VS+2}, {rWS}, s55 offen offset:{512*t} sc1")
                fill.append(f"v_and_b32 v{T}, 0xf0, v{VS+2}")
                fill.append(f"buffer_load_dwordx4 {V(ST+16,4)}, v{T}, {rWS}, s58 offen sc1")
            k = min(3, len(pend)); fill += pend[:k]; pend = pend[k:]
            weave(a, mf, fill)
        if s in (0, 1, 2, 3, 5, 7, 9): ts(f"s1.k{s}")
    if cfg.get("P"):
        Lc = a.lab("Lc"); Lo = a.lab("Lo")
        a(f"s_waitcnt vmcnt(0)\n{Lc}:")
        a(f"v_cmp_ne_u32 vcc, s{sTAG}, v{ST+2}")
        for t in range(1, 5): a(f"v_cmp_ne_u32 s[58:59], s{sTAG}, v{ST+4*t+2}\ns_or_b64 vcc, vcc, s[58:59]")
        a(f"s_cbranch_vccz {Lo}"); a.cond_begin()
        spin_guard(a, cfg["end"])
        for t in range(4): a(f"buffer_load_dwordx4 {V(ST+4*t,4)}, v{VS+2}, {rWS}, s55 offen offset:{512*t} sc1")
        a(f"s_mov_b32 s3, {W_ST1}\nbuffer_load_dwordx4 {V(ST+16,4)}, v{T}, {rWS}, s3 offen sc1\ns_waitcnt vmcnt(0)\ns_branch {Lc}")
        a.cond_end(); a(f"{Lo}:\ns_waitcnt vmcnt(0)")
    ts("s1.stat")
    for i in range(16): a(f"v_mov_b32 v{CS+i}, v{ACC+64+i}")
    for i in range(16): a(f"v_mov_b32_dpp v{CS+i}, v{ACC+64+i} row_bcast:15 row_mask:0xa bank_mask:0xf")
    for t in range(5):
        if t == 4:
            L = a.lab("Lh"); a(f"s_cmp_lg_u32 s{sRT}, 0\ns_cbranch_scc1 {L}"); a.cond_begin()
        pk = PK + 8 * (t & 1)
        for i in range(0, 16, 2):
            tt = T + (i & 6)
            a(f"v_pk_mul_f32 {V(tt,2)}, {V(CS+i,2)}, {V(ST+4*t,2)} op_sel:[0,1] op_sel_hi:[1,1]")
            a(f"v_pk_fma_f32 {V(tt,2)}, {V(ACC+16*t+i,2)}, {V(ST+4*t,2)}, {V(tt,2)} op_sel:[0,0,0] op_sel_hi:[1,0,1]")
            a(f"v_cvt_pk_bf16_f32 v{pk+i//2}, v{tt}, v{tt+1}")
        if t < 4:
            for o in range(2): a(f"buffer_store_dwordx4 {V(pk+4*o,4)}, v{VS+o}, {rWS}, s57 offen offset:{512*t}")
        else:
            for o in range(2): a(f"v_subrev_u32 v{VS+o}, 256, v{VS+o}")
            a("s_mov_b32 exec_lo, 0xffff0000\ns_mov_b32 exec_hi, 0xffff0000")
            for o in range(2): a(f"buffer_store_dwordx4 {V(pk+4*o,4)}, v{VS+o}, {rWS}, s56 offen")
            a("s_mov_b64 exec, -1")
            a.cond_end(); a(f"{L}:")
    ts("s1.end")

def st_attn(a, cfg):
    vr = Regs("v", 1, 254)
    Q = vr.get(12, 4); K = vr.get(96, 4); Vv = vr.get(96, 4); LG = vr.get(8, 4); T = vr.get(8, 4); O = vr.get(20, 4)
    VA, VHh, VD, LA, LH = [vr.get() for _ in range(5)]
    LD = cfg.get("ld", "")
    a(f"""s_lshr_b32 s40, s{sM}, 2
    s_and_b32 s41, s{sM}, 3
    s_lshl_b32 s41, s41, 2
    s_add_u32 s41, s41, s{sW}
    s_mul_i32 s42, s41, {5*QCS}
    s_lshl_b32 s43, s40, 9
    s_add_u32 s42, s42, s43
    s_lshl_b32 s44, s{sW}, 13
    v_lshlrev_b32 v{VD}, 4, v0
    s_mov_b32 exec_hi, 0xffff""")
    tk = None
    for c in range(10):
        ch = 80 + c if c < 5 else 155 + c
        a(f"s_add_u32 s45, s42, {W_QKV + ch*QCS}\ns_add_u32 m0, s44, {c*768}")
        tk = a(f"buffer_load_dwordx4 v{VD}, {rWS}, s45 offen {LD} lds")
    a(f"""s_mov_b64 exec, -1
    v_and_b32 v{T}, 15, v0
    v_lshrrev_b32 v{T+1}, 5, v0
    v_lshl_add_u32 v{T}, v{T+1}, 4, v{T}
    v_lshlrev_b32 v{T+1}, 4, v{T}
    v_bfe_u32 v{T+2}, v0, 4, 1
    v_mul_u32_u24 v{T+3}, {3*QCS}, v{T+2}
    v_add_u32 v{VA}, v{T+3}, v{T+1}
    v_lshl_add_u32 v{VHh}, v{T+2}, 3, v{T+1}
    s_add_u32 s45, s42, {W_QKV+256}
    s_add_u32 s46, s42, {W_QKV+256+QCS}
    s_add_u32 s47, s42, {W_QKV+256+2*QCS}
    buffer_load_dwordx4 {V(Q,4)}, v{VA}, {rWS}, s45 offen {LD}
    buffer_load_dwordx4 {V(Q+4,4)}, v{VA}, {rWS}, s46 offen {LD}
    buffer_load_dwordx2 {V(Q+8,2)}, v{VHh}, {rWS}, s47 offen {LD}
    v_mul_u32_u24 v{T+3}, {3*768}, v{T+2}
    v_add3_u32 v{LA}, v{T+3}, v{T+1}, s44
    v_add_u32 v{LH}, s44, v{VHh}
    v_mul_u32_u24 v{T+3}, {3*4096}, v{T+2}
    v_add_u32 v{VA}, v{T+3}, v{T+1}
    s_mul_i32 s45, s41, {5*4096}
    s_add_u32 s45, s45, s43
    s_add_u32 s45, s45, {W_O}
    s_add_u32 s46, s45, 4096
    s_add_u32 s47, s45, 8192
    s_or_b32 s48, s40, s{sG}""")
    a.wait(tk)
    def rd(base, w, sec):
        o = 32 + (7 - w) * 32 + sec * 3840
        a(f"ds_read_b128 {V(base+12*w,4)}, v{LA} offset:{o}\nds_read_b128 {V(base+12*w+4,4)}, v{LA} offset:{o+768}\nds_read_b64 {V(base+12*w+8,2)}, v{LH} offset:{o+1536}")
    for w in range(4): rd(K, w, 0)
    for w0 in range(0, 8, 2):
        if w0 + 4 < 8: rd(K, w0 + 4, 0); rd(K, w0 + 5, 0)
        else: rd(Vv, w0 - 4, 1); rd(Vv, w0 - 3, 1)
        for j in range(10):
            for w in (w0, w0 + 1):
                a(f"v_dot2_f32_bf16 v{LG+w}, v{Q+j}, v{K+12*w+j}, {0 if j == 0 else V(LG+w)}")
    for w in range(4, 8): rd(Vv, w, 1)
    L = a.lab("Lm"); a(f"s_cmp_lg_u32 s48, 0\ns_cbranch_scc1 {L}"); a.cond_begin()
    a(f"v_mov_b32 v{T+4}, {f2u(-1e30)}")
    for w in range(1, 8): a(f"v_cmp_le_u32 vcc, {2*w}, v{T}\nv_cndmask_b32 v{LG+w}, v{T+4}, v{LG+w}, vcc")
    a.cond_end(); a(f"{L}:")
    c = 20 ** -0.5 * 1.4426950408889634
    a(f"""v_max3_f32 v{T+4}, v{LG}, v{LG+1}, v{LG+2}
    v_max3_f32 v{T+5}, v{LG+3}, v{LG+4}, v{LG+5}
    v_max3_f32 v{T+4}, v{T+4}, v{LG+6}, v{LG+7}
    s_mov_b32 s49, {f2u(c)}
    v_max_f32 v{T+4}, v{T+4}, v{T+5}""")
    for w in range(8): a(f"v_sub_f32 v{LG+w}, v{LG+w}, v{T+4}")
    for w in range(8): a(f"v_mul_f32 v{LG+w}, s49, v{LG+w}")
    for w in range(8): a(f"v_exp_f32 v{LG+w}, v{LG+w}")
    a(f"""v_pk_add_f32 {V(T+4,2)}, {V(LG,2)}, {V(LG+2,2)}
    v_pk_add_f32 {V(T+6,2)}, {V(LG+4,2)}, {V(LG+6,2)}
    v_pk_add_f32 {V(T+4,2)}, {V(T+4,2)}, {V(T+6,2)}
    v_add_f32 v{T+4}, v{T+4}, v{T+5}
    v_rcp_f32 v{T+4}, v{T+4}
    s_mov_b32 s50, 0x05040100
    s_mov_b32 s51, 0x07060302""")
    for w in range(0, 8, 2): a(f"v_pk_mul_f32 {V(LG+w,2)}, {V(LG+w,2)}, {V(T+4,2)} op_sel_hi:[1,0]")
    for w in range(0, 8, 2): a(f"v_cvt_pk_bf16_f32 v{T+w//2}, v{LG+w}, v{LG+w+1}")
    for w in range(0, 8, 2):
        for j in range(10):
            a(f"v_perm_b32 v{K+2*j}, v{Vv+12*(w+1)+j}, v{Vv+12*w+j}, s50\nv_perm_b32 v{K+2*j+1}, v{Vv+12*(w+1)+j}, v{Vv+12*w+j}, s51")
        for j in range(20):
            a(f"v_dot2_f32_bf16 v{O+j}, v{K+j}, v{T+w//2}, {0 if w == 0 else V(O+j)}")
    for j in range(10): a(f"v_cvt_pk_bf16_f32 v{Q+j}, v{O+2*j}, v{O+2*j+1}")
    a(f"""buffer_store_dwordx4 {V(Q,4)}, v{VA}, {rWS}, s45 offen
    buffer_store_dwordx4 {V(Q+4,4)}, v{VA}, {rWS}, s46 offen
    buffer_store_dwordx2 {V(Q+8,2)}, v{VHh}, {rWS}, s47 offen""")

def stage_w64(a, srd, KS, AB, vr, rounds):
    VW = vr.get(4); RA = vr.get(2); T = vr.get(4)
    a(f"""v_lshrrev_b32 v{T}, 3, v0
    v_mul_u32_u24 v{T}, 1280, v{T}
    v_and_b32 v{T+1}, 7, v0
    v_bfe_u32 v{T+2}, v0, 4, 1
    v_lshlrev_b32 v{T+2}, 2, v{T+2}
    v_xor_b32 v{T+1}, v{T+1}, v{T+2}
    v_lshl_add_u32 v{VW}, v{T+1}, 4, v{T}""")
    for i in range(1, 4): a(f"v_add_u32 v{VW+i}, {i*(10240-1024)}, v{VW}")
    lane_tr(a, RA, T)
    a(f"""v_lshl_add_u32 v{RA}, v{T}, 7, v{RA}
    v_lshrrev_b32 v{T+1}, 1, v{T+1}
    v_lshl_add_u32 v{RA}, v{T+1}, 6, v{RA}
    s_mul_i32 s44, s{sW}, 40960
    v_add_u32 v{RA}, s44, v{RA}
    v_xor_b32 v{RA+1}, 64, v{RA}
    s_mul_i32 s45, s{sW}, {KS*16*1280}
    s_lshl_b32 s46, s40, 7
    s_add_u32 s45, s45, s46""")
    J0 = 0
    for n in rounds:
        tk = {}
        if J0: a("s_waitcnt lgkmcnt(0)")
        for i in range(2 * n):
            if i % 4 == 0: a(f"s_add_u32 s46, s45, {(J0*2+i)*10240}\ns_add_u32 m0, s44, {i*1024}")
            tk[i] = a(f"buffer_load_dwordx4 v{VW+i%4}, {srd}, s46 offen offset:{1024*(i%4)} lds")
        for J in range(n):
            a.wait(tk[2 * J + 1])
            for cb in range(2):
                for e in range(2):
                    a(f"ds_read_b64_tr_b16 {AG(AB+8*(J0+J)+4*cb+2*e,2)}, v{RA+cb} offset:{J*2048+e*512}")
        J0 += n

def st_ksplit(a, cfg, which):
    KS = 10 if which == 2 else 27
    src = W_O if which == 2 else W_H1
    LD = cfg.get("ld", "")
    vr = Regs("v", 1, 254)
    a(f"""s_mul_i32 s41, s{sM}, 205
    s_lshr_b32 s41, s41, 11
    s_mul_i32 s40, s41, 10
    s_sub_u32 s40, s{sM}, s40""")
    if cfg.get("P"): cfg["ts"](f"k{which}.begin")
    stage_w64(a, rWO if which == 2 else rW2, KS, 0, vr, [10] if which == 2 else [14, 13])
    a("s_waitcnt lgkmcnt(0)")
    if cfg.get("P"): cfg["ts"](f"k{which}.staged")
    if cfg.get("P"): cfg[f"wait{which}"]()
    else: a("s_barrier")
    NB = 30
    ACC = [vr.get(32, 4) for _ in range(2)]; B = vr.get(4 * NB, 4)
    RS = vr.get(12, 4); RD = vr.get(32, 4)
    VB, VWr, VRd, VRd2, VRes, VOut, VSt = [vr.get() for _ in range(7)]; T = vr.get(4, 4)
    OST = 2048 + 128 + (128 if which == 4 else 0); WST = 4 * OST + 0; BUF = 4 * WST
    hp = 0 if which == 2 else 64
    if which == 4: OST = 2048 + 128 + 256; WST = 4 * OST; BUF = 4 * WST
    a(f"""v_and_b32 v{T}, 31, v0
    v_lshrrev_b32 v{T+1}, 5, v0
    v_lshlrev_b32 v{T}, 4, v{T}
    v_lshl_add_u32 v{VB}, v{T+1}, 12, v{T}
    v_mul_u32_u24 v{T+1}, {512+hp}, v{T+1}
    s_mul_i32 s42, s{sW}, {WST}
    v_add3_u32 v{VWr}, v{T}, v{T+1}, s42
    s_mul_i32 s42, s41, {96*16}
    s_mul_i32 s43, s{sW}, {KS*8192}
    s_add_u32 s43, s43, s42
    s_add_u32 s43, s43, {src}""")
    if which == 2: a(f"v_and_b32 v{T}, 7, v0\nv_lshrrev_b32 v{T+1}, 3, v0")
    else: a(f"v_lshrrev_b32 v{T}, 3, v0\nv_and_b32 v{T+1}, 7, v0")
    JS = 1024 + 2 * hp
    a(f"""s_lshl_b32 s44, s{sW}, 3
    v_add_u32 v{T}, s44, v{T}
    v_lshrrev_b32 v{T+2}, 1, v{T+1}
    v_mul_u32_u24 v{T+2}, {OST}, v{T+2}
    v_and_b32 v{T+3}, 1, v{T+1}
    v_mul_u32_u24 v{T+3}, {512+hp}, v{T+3}
    v_add_u32 v{T+2}, v{T+2}, v{T+3}
    v_lshl_add_u32 v{VRd}, v{T}, 4, v{T+2}
    v_add_u32 v{VRd2}, {BUF}, v{VRd}
    v_mul_u32_u24 v{T+2}, 1280, v{T}
    v_lshl_add_u32 v{VOut if which == 4 else VRes}, v{T+1}, 4, v{T+2}
    v_lshlrev_b32 v{T+2}, 4, v{T}
    v_lshl_add_u32 v{VRes if which == 4 else VOut}, v{T+1}, 12, v{T+2}
    v_lshlrev_b32 v{VSt}, 3, v{T}
    s_lshl_b32 s44, s{sG}, 8
    s_mul_i32 s45, s41, 96
    s_add_u32 s44, s44, s45
    s_mul_i32 s44, s44, 1280
    s_lshl_b32 s45, s40, 7
    s_add_u32 s44, s44, s45
    s_add_u32 s45, s44, 40960
    s_add_u32 s46, s44, 81920
    s_lshl_b32 s47, s40, 15
    s_add_u32 s47, s47, s42
    s_add_u32 s47, s47, {W_H}
    s_lshl_b32 s48, s40, 11
    s_lshr_b32 s49, s42, 1
    s_add_u32 s48, s48, s49
    s_add_u32 s48, s48, {W_HS}
    s_mov_b32 s50, 0x3f803f80
    s_cmp_eq_u32 s41, 2
    s_cselect_b32 s46, {BIG}, s46
    s_cselect_b32 s51, {BIG}, s43
    s_cselect_b32 s52, {BIG}, s47
    s_cselect_b32 s53, {BIG}, s48""")
    for tb in range(3):
        if which == 2: a(f"buffer_load_dwordx4 {V(RS+4*tb,4)}, v{VRes}, {rX}, s{44+tb} offen")
        else: a(f"buffer_load_dwordx4 {V(RS+4*tb,4)}, v{VRes}, {rWS}, s{47 if tb < 2 else 52} offen offset:{512*tb} {LD}")
    seq = [(tb, J) for tb in range(3) for J in range(KS)]
    def ld(i):
        tb, J = seq[i]
        return f"s_add_u32 s54, s{43 if tb < 2 else 51}, {J*8192}\nbuffer_load_dwordx4 {V(B+4*(i%NB),4)}, v{VB}, {rWS}, s54 offen offset:{512*tb} {LD}"
    ts = cfg["ts"] if cfg.get("P") else (lambda n: None)
    ts(f"k{which}.pre")
    for i in range(min(NB, len(seq))): a(ld(i))
    ts(f"k{which}.issued")
    def red_write(tb):
        bo = (tb & 1) * BUF
        return [f"ds_write_b128 v{VWr}, {V(ACC[tb&1]+8*o+4*j,4)} offset:{bo+o*OST+j*JS}" for o in range(4) for j in range(2)]
    def red_fin(tb):
        bo = (tb & 1) * BUF
        F = ["s_waitcnt lgkmcnt(0)\ns_barrier"]
        F += [f"ds_read_b128 {V(RD+8*s+4*j,4)}, v{VRd2 if tb & 1 else VRd} offset:{s*WST+j*JS}" for s in range(4) for j in range(2)]
        for i in range(8): F.append(f"v_add_f32 v{RD+i}, v{RD+i}, v{RD+8+i}")
        for i in range(8): F.append(f"v_add_f32 v{RD+16+i}, v{RD+16+i}, v{RD+24+i}")
        for i in range(4):
            F.append(f"v_lshlrev_b32 v{RD+8+2*i}, 16, v{RS+4*tb+i}")
            F.append(f"v_and_b32 v{RD+9+2*i}, 0xffff0000, v{RS+4*tb+i}")
        for i in range(8): F.append(f"v_add_f32 v{RD+i}, v{RD+i}, v{RD+16+i}")
        for i in range(8): F.append(f"v_add_f32 v{RD+i}, v{RD+i}, v{RD+8+i}")
        for i in range(4): F.append(f"v_cvt_pk_bf16_f32 v{RS+4*tb+i}, v{RD+2*i}, v{RD+2*i+1}")
        if which == 4:
            F.append(f"buffer_store_dwordx4 {V(RS+4*tb,4)}, v{VOut}, {rOUT}, s{44+tb} offen")
        else:
            F.append(f"buffer_store_dwordx4 {V(RS+4*tb,4)}, v{VOut}, {rWS}, s{47 if tb < 2 else 52} offen offset:{512*tb}")
            for i in range(4):
                F.append(f"v_dot2_f32_bf16 v{T}, v{RS+4*tb+i}, s50, {0 if i == 0 else V(T)}")
                F.append(f"v_dot2_f32_bf16 v{T+1}, v{RS+4*tb+i}, v{RS+4*tb+i}, {0 if i == 0 else V(T+1)}")
            for q in range(2): F.append(f"v_add_f32_dpp v{T+q}, v{T+q}, v{T+q} row_ror:8 row_mask:0xf bank_mask:0xf")
            for pl in ("v_permlane16_swap_b32", "v_permlane32_swap_b32"):
                for q in range(2): F.append(f"v_mov_b32 v{T+2+q}, v{T+q}")
                for q in range(2): F.append(f"{pl} v{T+q}, v{T+2+q}")
                for q in range(2): F.append(f"v_add_f32 v{T+q}, v{T+q}, v{T+2+q}")
            F.append(f"s_mov_b64 exec, 0xff\nbuffer_store_dwordx2 {V(T,2)}, v{VSt}, {rWS}, s{48 if tb < 2 else 53} offen offset:{256*tb}\ns_mov_b64 exec, -1")
        return F
    nl = min(NB, len(seq))
    for tb in range(3):
        mf = []; fill = []
        if tb: fill = red_write(tb - 1) + red_fin(tb - 1)
        per = -(-len(fill) // (2 * KS - 2)) if fill else 0
        k = 0
        for J in range(KS):
            i = tb * KS + J
            for cb in range(2):
                c = V(ACC[tb & 1] + 16 * cb, 16)
                a(f"{MF} {c}, {AG(8*J+4*cb,4)}, {V(B+4*(i%NB),4)}, {0 if J == 0 else c}")
                if J + cb > 0:
                    for f in fill[k:k + per]: a(f)
                    k += per
            if nl < len(seq): a(ld(nl)); nl += 1
        for f in fill[k:]: a(f)
        ts(f"k{which}.tb{tb}")
    for f in red_write(2) + red_fin(2): a(f)
    ts(f"k{which}.end")

def st3(a, cfg):
    LD = cfg.get("ld", "")
    vr = Regs("v", 1, 254)
    VW = vr.get(4); RA = vr.get(); T = vr.get(8, 4)
    a(f"""s_cmp_ge_u32 s{sM}, 14
    s_cselect_b32 s41, 1, 0
    s_mul_i32 s40, s41, 14
    s_sub_u32 s40, s{sM}, s40
    v_lshrrev_b32 v{T}, 2, v0
    v_mul_u32_u24 v{T}, 3456, v{T}
    v_and_b32 v{T+1}, 3, v0
    v_lshl_add_u32 v{VW}, v{T+1}, 4, v{T}""")
    for i in range(1, 4): a(f"v_add_u32 v{VW+i}, {i*(16*3456-1024)}, v{VW}")
    lane_tr(a, RA, T)
    a(f"""v_lshl_add_u32 v{RA}, v{T}, 6, v{RA}
    s_mul_i32 s44, s{sW}, 40960
    v_add_u32 v{RA}, s44, v{RA}
    s_lshl_b32 s45, s40, 8
    s_lshl_b32 s46, s{sW}, 6
    s_add_u32 s45, s45, s46""")
    tk = {}
    ts = cfg["ts"] if cfg.get("P") else (lambda n: None)
    ts("s3.begin")
    for J in range(40):
        if J % 4 == 0: a(f"s_add_u32 s46, s45, {J*16*3456}\ns_add_u32 m0, s44, {J*1024}")
        tk[J] = a(f"buffer_load_dwordx4 v{VW+J%4}, {rW1}, s46 offen offset:{1024*(J%4)} lds")
    CS = vr.get(16, 4); ONE = vr.get(4, 4)
    for q in range(4): a(f"v_mov_b32 v{ONE+q}, 0x3f803f80")
    for J in range(40):
        a.wait(tk[J])
        for e in range(2): a(f"ds_read_b64_tr_b16 {AG(4*J+2*e,2)}, v{RA} offset:{J*1024+e*256}")
    ts("s3.staged")
    for J in range(40): a(f"{MF} {V(CS,16)}, {AG(4*J,4)}, {V(ONE,4)}, {0 if J == 0 else V(CS,16)}")
    ts("s3.cs")
    if cfg.get("P"): cfg["wait3"]()
    else: a("s_barrier")
    HS = vr.get(10 * 4, 4); STT = vr.get(12, 4)
    VD = vr.get(4); VP = vr.get(); VS = vr.get(2); RB = vr.get(3)
    a(f"""v_and_b32 v{T}, 31, v0
    v_lshrrev_b32 v{T+1}, 5, v0
    v_mul_u32_u24 v{T+2}, {5*2048}, v{T+1}
    v_lshl_add_u32 v{VP}, v{T}, 3, v{T+2}
    v_lshlrev_b32 v{T}, 4, v{T}
    v_lshl_add_u32 v{VD}, v{T+1}, 12, v{T}
    v_mov_b32 v{VS}, v{VD}
    v_add_u32 v{VS+1}, 8192, v{VD}
    v_lshlrev_b32 v{RB}, 4, v0
    v_add_u32 v{RB+1}, 0x10000, v{RB}
    v_add_u32 v{RB+2}, 0x20000, v{RB}
    s_lshl_b32 s42, s41, 11
    s_mul_i32 s43, s{sW}, {10*8192}
    s_add_u32 s43, s43, s42
    s_add_u32 s43, s43, {W_H}
    s_mul_i32 s44, s{sW}, 10240
    s_lshl_b32 s45, s41, 10
    s_add_u32 s45, s45, {W_HS}
    s_lshl_b32 s47, s40, 2
    s_add_u32 s47, s47, s{sW}
    s_cmp_ge_u32 s47, 54
    s_cselect_b32 s48, {BIG}, 0
    s_lshl_b32 s47, s47, 14
    s_add_u32 s47, s47, s42
    s_add_u32 s47, s47, {W_H1}
    s_or_b32 s47, s47, s48""")
    for i in range(1, 4): a(f"v_add_u32 v{VD+i}, {i*(8192-1024)}, v{VD}")
    tkb = {}
    def dma_blk(b):
        F = []
        for i in range(10):
            def f(i=i):
                if i % 4 == 0: a(f"s_add_u32 s46, s43, {i*8192+b*512}\ns_add_u32 m0, s44, {b*40960+i*1024}")
                tkb[b] = a(f"buffer_load_dwordx4 v{VD+i%4}, {rWS}, s46 offen offset:{1024*(i%4)} {LD} lds")
            F.append(f)
        return F
    ts("s3.pre")
    for f in dma_blk(0): f()
    for b in range(4):
        for i in range(5):
            a(f"s_add_u32 s46, s45, {i*2048}\nbuffer_load_dwordx2 {V(HS+10*b+2*i,2)}, v{VP}, {rWS}, s46 offen offset:{256*b} {LD}")
    for b in range(1, 4):
        for f in dma_blk(b): f()
    for b in range(4):
        h = HS + 10 * b
        a(f"""v_pk_add_f32 {V(h,2)}, {V(h,2)}, {V(h+2,2)}
        v_pk_add_f32 {V(h+4,2)}, {V(h+4,2)}, {V(h+6,2)}
        v_pk_add_f32 {V(h,2)}, {V(h,2)}, {V(h+8,2)}
        v_pk_add_f32 {V(h,2)}, {V(h,2)}, {V(h+4,2)}
        v_mov_b32 v{h+2}, v{h}
        v_mov_b32 v{h+3}, v{h+1}
        v_permlane32_swap_b32 v{h}, v{h+2}
        v_permlane32_swap_b32 v{h+1}, v{h+3}
        v_pk_add_f32 {V(h,2)}, {V(h,2)}, {V(h+2,2)}
        v_mul_f32 v{STT+3*b}, {f2u(-1/640)}, v{h}
        v_mul_f32 v{h+1}, {f2u(1/640)}, v{h+1}
        v_fma_f32 v{h+1}, -v{STT+3*b}, v{STT+3*b}, v{h+1}
        v_max_f32 v{h+1}, 0, v{h+1}
        v_add_f32 v{h+1}, {f2u(1e-5)}, v{h+1}
        v_rsq_f32 v{h}, v{h+1}
        v_mul_f32 v{STT+3*b+2}, v{h+1}, v{h}
        v_mul_f32 v{STT+3*b+1}, {f2u(-1.4426950408889634)}, v{h}""")
    ACC = [vr.get(16, 4) for _ in range(2)]; NBF = 8; BF = vr.get(4 * NBF, 4); E = vr.get(16, 4); PK = vr.get(8, 4)
    def rd(i):
        off = i * 1024
        return f"ds_read_b128 {V(BF+4*(i%NBF),4)}, v{RB+off//65536} offset:{off%65536}"
    def epi(b):
        ac = ACC[b & 1]; F = []
        for h in range(0, 16, 4):
            r = range(h, h + 4)
            F += [f"v_fma_f32 v{ac+i}, v{STT+3*b}, v{CS+i}, v{ac+i}" for i in r]
            F += [f"v_mul_f32 v{E+i}, v{STT+3*b+1}, v{ac+i}" for i in r]
            F += [f"v_exp_f32 v{E+i}, v{E+i}" for i in r]
            F += [f"v_fma_f32 v{E+i}, v{E+i}, v{STT+3*b+2}, v{STT+3*b+2}" for i in r]
            F += [f"v_rcp_f32 v{E+i}, v{E+i}" for i in r]
            F += [f"v_mul_f32 v{E+i}, v{E+i}, v{ac+i}" for i in r]
            F += [f"v_cvt_pk_bf16_f32 v{PK+i//2}, v{E+i}, v{E+i+1}" for i in (h, h + 2)]
            if h & 4: F.append(f"buffer_store_dwordx4 {V(PK+4*(h//8),4)}, v{VS+h//8}, {rWS}, s47 offen offset:{512*b}")
        return F
    PD = 6
    ts("s3.stats")
    a.wait(tkb[0]); a("s_barrier")
    ts("s3.bar0")
    for i in range(PD): a(rd(i))
    for b in range(4):
        fill = epi(b - 1) if b else []
        k = 0
        for J in range(40):
            i = b * 40 + J
            c = V(ACC[b & 1], 16)
            a(f"{MF} {c}, {AG(4*J,4)}, {V(BF+4*(i%NBF),4)}, {0 if J == 0 else c}")
            if J == 40 - PD and b < 3: a.wait(tkb[b + 1]); a("s_barrier")
            if i + PD < 160: a(rd(i + PD))
            if J >= 2:
                for f in fill[k:k + 3]: a(f)
                k += 3
        assert k >= len(fill)
        ts(f"s3.b{b}")
    for f in epi(3): a(f)
    ts("s3.end")

sPURE, sSPIN = 90, 91
W_STAMP = 0x10C000
class Stamps:
    def __init__(self, a, on): self.a = a; self.on = on; self.n = 0; self.names = []
    def __call__(self, name="main"):
        if self.on and (name == "start" or name.split(".")[0] in self.on):
            assert self.n < 13
            self.a(f"s_memtime s[{64+2*self.n}:{65+2*self.n}]"); self.n += 1; self.names.append(name)
    def flush(self):
        if not self.on: return
        a = self.a
        a(f"s_memrealtime s[62:63]\ns_waitcnt lgkmcnt(0)\ns_lshl_b32 s3, s{sM}, 2\ns_add_u32 s3, s3, s{sW}\ns_lshl_b32 s3, s3, 6\ns_add_u32 s3, s3, {W_STAMP}\nv_mov_b32 v2, 0\ns_mov_b64 exec, 1")
        for i, r in enumerate([60, 62] + [64 + 2 * k for k in range(self.n)]):
            a(f"v_mov_b32 v1, s{r}\nbuffer_store_dword v1, v2, {rWS}, s3 offen offset:{4*i}")
        a("s_waitcnt vmcnt(0)")

def spin_guard(a, end):
    a(f"s_sub_u32 s{sSPIN}, s{sSPIN}, 1\ns_cbranch_scc1 {end}")

def sync_init(a):
    a(f"s_mov_b32 s{sSPIN}, 0x100000\ns_mov_b32 s3, {W_FLG}\nv_mov_b32 v254, 0")
    a(f"buffer_load_dword v255, v254, {rWS}, s3 offen sc1")

def sync_post(a):
    a(f"v_readfirstlane_b32 s{sTAG}, v255\ns_add_u32 s{sTAG}, s{sTAG}, 1")
    L = a.lab("Lp"); a(f"s_cmp_lg_u32 s{sW}, 0\ns_cbranch_scc1 {L}"); a.cond_begin()
    a(f"""s_getreg_b32 s3, hwreg(HW_REG_XCC_ID, 0, 4)
    s_or_b32 s3, s3, 0x80
    v_mov_b32 v255, s3
    s_lshl_b32 s3, s{sG}, 5
    s_add_u32 s3, s3, s{sM}
    s_mov_b64 exec, 1
    buffer_store_byte v255, v254, {rDBG}, s3 offen sc0 sc1
    s_mov_b64 exec, -1""")
    a.cond_end(); a(f"{L}:")

def sync_purity(a, end):
    L = a.lab("Lq"); a(f"s_cmp_lg_u32 s{sW}, 0\ns_cbranch_scc1 {L}"); a.cond_begin()
    P = a.lab("Lpp")
    a(f"""s_getreg_b32 s92, hwreg(HW_REG_XCC_ID, 0, 4)
    s_or_b32 s92, s92, 0x80
    s_lshl_b32 s3, s{sG}, 5
    s_mov_b32 exec_hi, 0
    {P}:""")
    spin_guard(a, end)
    a(f"""buffer_load_ubyte v255, v0, {rDBG}, s3 offen sc0 sc1
    s_waitcnt vmcnt(0)
    v_cmp_eq_u32 vcc, 0, v255
    s_cbranch_vccnz {P}
    v_cmp_ne_u32 vcc, s92, v255
    s_cmp_eq_u64 vcc, 0
    s_cselect_b32 s{sPURE}, 1, 0
    s_mov_b32 s3, {BIG}
    s_cmp_eq_u32 s{sM}, 0
    s_cselect_b32 s3, {W_FLG}, s3
    v_mov_b32 v255, s{sTAG}
    v_mov_b32 v254, 0
    s_mov_b64 exec, 1
    buffer_store_dword v255, v254, {rWS}, s3 offen sc0 sc1
    s_mov_b64 exec, -1""")
    a.cond_end(); a(f"{L}:")

def publish(a, stage):
    a("s_waitcnt vmcnt(0) lgkmcnt(0)\ns_barrier")
    L = a.lab("Lb"); L2 = a.lab("Lb"); a(f"s_cmp_lg_u32 s{sW}, 0\ns_cbranch_scc1 {L}"); a.cond_begin()
    a(f"""s_lshl_b32 s3, s{sM}, 2
    s_add_u32 s3, s3, {W_FLG + 128*stage}
    v_mov_b32 v255, s{sTAG}
    v_mov_b32 v254, 0
    s_mov_b64 exec, 1
    s_cmp_eq_u32 s{sPURE}, 0
    s_cbranch_scc1 {L2}
    buffer_store_dword v255, v254, {rWS}, s3 offen
    s_mov_b64 exec, -1
    s_branch {L}
    {L2}:
    buffer_wbl2 sc1
    s_waitcnt vmcnt(0)
    buffer_store_dword v255, v254, {rWS}, s3 offen sc0 sc1
    s_mov_b64 exec, -1""")
    a.cond_end(); a(f"{L}:")

def await_(a, stage, end):
    L = a.lab("La"); P = a.lab("Lap"); a(f"s_cmp_lg_u32 s{sW}, 0\ns_cbranch_scc1 {L}"); a.cond_begin()
    a(f"""s_mov_b32 s3, {W_FLG + 128*stage}
    v_lshlrev_b32 v254, 2, v0
    s_mov_b32 exec_lo, s92
    s_mov_b32 exec_hi, 0
    {P}:""")
    spin_guard(a, end)
    a(f"""buffer_load_dword v255, v254, {rWS}, s3 offen sc1
    s_waitcnt vmcnt(0)
    v_cmp_ne_u32 vcc, s{sTAG}, v255
    s_cbranch_vccnz {P}
    s_mov_b64 exec, -1
    s_cmp_lg_u32 s{sPURE}, 0
    s_cbranch_scc1 {L}
    buffer_inv sc1
    s_waitcnt vmcnt(0)""")
    a.cond_end(); a(f"{L}:\ns_barrier")

def gen_P(cfg):
    a = Asm(); cfg = dict(cfg); cfg.setdefault("ld", "sc1"); cfg["P"] = True
    hdr = header() + "; @launch grid=(256,1,1) block=(256,1,1) lds=163840\n" + '.amdgcn_target "amdgcn-amd-amdhsa--gfx950"\n.text\n'
    n = NAME
    a(f".globl {n}_kernel\n.p2align 8\n.type {n}_kernel,@function\n{n}_kernel:")
    end = "Lend"; cfg["end"] = end
    ts = Stamps(a, cfg.get("stamps", 0)); cfg["ts"] = ts
    if ts.on: a("s_memrealtime s[60:61]")
    ts("start")
    prologue(a, end)
    sync_init(a)
    a(f"s_cmp_ge_u32 s{sM}, 30\ns_cbranch_scc1 Lst0")
    st1(a, cfg)
    ts()
    sync_purity(a, end)
    publish(a, 1)
    a("s_branch Lattn\nLst0:")
    a("s_waitcnt vmcnt(0)"); a.reset()
    sync_post(a)
    st0(a)
    sync_purity(a, end)
    a("s_waitcnt vmcnt(0) lgkmcnt(0)\nLattn:"); a.reset()
    ts()
    a(f"""s_and_b32 s40, s{sM}, 3
    s_lshl_b32 s40, s40, 1
    s_lshl_b32 s92, {0b0101 | 0b0101 << 10 | 0b0101 << 20}, s40
    s_lshr_b32 s40, s{sM}, 2
    s_lshl_b32 s41, s92, 1
    s_or_b32 s42, s41, s92
    s_cmp_ge_u32 s40, 4
    s_cselect_b32 s92, s41, s92
    s_cmp_eq_u32 s40, 4
    s_cselect_b32 s92, s42, s92""")
    await_(a, 1, end); ts()
    st_attn(a, cfg); ts()
    publish(a, 2); ts()
    a(f"s_cmp_ge_u32 s{sM}, 30\ns_cbranch_scc1 Lfin")
    cfg["wait2"] = lambda: (a(f"s_mul_i32 s92, s41, 12\ns_lshl_b32 s92, 0xfff, s92"), await_(a, 2, end), ts())
    st_ksplit(a, cfg, 2); ts()
    publish(a, 3)
    a(f"s_cmp_ge_u32 s{sM}, 28\ns_cbranch_scc1 Lst4")
    cfg["wait3"] = lambda: (a(f"s_mul_i32 s92, s41, 10\ns_lshl_b32 s92, 0xfffff, s92"), await_(a, 3, end), ts())
    st3(a, cfg); ts()
    publish(a, 4)
    a("Lst4:"); a.reset()
    cfg["wait4"] = lambda: (a(f"s_mov_b32 s92, 0xfffffff\ns_cmp_eq_u32 s41, 0\ns_cselect_b32 s92, 0x3fff, s92\ns_cmp_eq_u32 s41, 2\ns_cselect_b32 s92, {0x3fff << 14}, s92"), await_(a, 4, end), ts())
    st_ksplit(a, cfg, 4)
    a("s_waitcnt vmcnt(0)"); ts()
    a("Lfin:")
    ts.flush(); print(ts.names, file=sys.stderr)
    a(f"{end}:\ns_endpgm")
    return hdr + a.finalize() + kd(n + "_kernel")

def kd(name, vg=512, acc=256):
    return f""".section .rodata,"a"
.p2align 6
.amdhsa_kernel {name}
  .amdhsa_next_free_vgpr {vg}
  .amdhsa_next_free_sgpr 96
  .amdhsa_accum_offset {acc}
  .amdhsa_group_segment_fixed_size 0
  .amdhsa_kernarg_size 72
  .amdhsa_user_sgpr_count 2
  .amdhsa_user_sgpr_kernarg_segment_ptr 1
  .amdhsa_system_sgpr_workgroup_id_x 1
.end_amdhsa_kernel
"""

def header():
    ref = open(f"cdna_kernels/{NAME}.s.ref").read().split("\n")
    return "\n".join(l for l in ref if l.startswith(";") and "@launch" not in l and "Override" not in l and "grid=ceil" not in l) + "\n"

def gen_M(cfg):
    a = Asm()
    ks = [("k0", lambda: st0(a), 30, 32), ("k1", lambda: st1(a, cfg), 0, 30), ("k2", lambda: st_attn(a, cfg), 0, 32),
          ("k3", lambda: st_ksplit(a, cfg, 2), 0, 30), ("k4", lambda: st3(a, cfg), 0, 28), (NAME, lambda: st_ksplit(a, cfg, 4), 0, 30)]
    hdr = header()
    for n, *_ in ks: hdr += f"; @launch kernel={n}_kernel grid=(256,1,1) block=(256,1,1) lds=163840\n"
    hdr += '.amdgcn_target "amdgcn-amd-amdhsa--gfx950"\n.text\n'
    for n, body, lo, hi in ks:
        a.reset()
        a(f".globl {n}_kernel\n.p2align 8\n.type {n}_kernel,@function\n{n}_kernel:")
        end = a.lab("Lend")
        prologue(a, end)
        if lo: a(f"s_cmp_lt_u32 s{sM}, {lo}\ns_cbranch_scc1 {end}")
        if hi < 32: a(f"s_cmp_ge_u32 s{sM}, {hi}\ns_cbranch_scc1 {end}")
        body()
        a(f"{end}:\ns_endpgm")
    return hdr + a.finalize() + "".join(kd(n + "_kernel") for n, *_ in ks)

if __name__ == "__main__":
    out = sys.argv[1] if len(sys.argv) > 1 else f"cdna_kernels/{NAME}.s"
    cfg = eval(sys.argv[2]) if len(sys.argv) > 2 else {}
    open(out, "w").write(gen_M(cfg) if cfg.get("M") else gen_P(cfg))
```

```python
import sys, struct
sys.path.insert(0, "tools")
from asmfw import *

NAME = "sequential_preLN__sliding_local_dilated__dense_activation_silu__prompt"
f2u = lambda x: hex(struct.unpack("<I", struct.pack("<f", x))[0])

WS_GROUP = 4 << 20
QCS = 272 * 16
W_QKV = 0; W_ST1 = 0x100000; W_HS = 0x102000; W_FLG = 0x108000; W_STAMP = 0x10C000
W_O = 0x110000; W_H = 0x160000; W_H1 = 0x1B0000
BIG = 0x7F000000
K = 1024

sG, sM, sW, sTAG = 4, 5, 6, 7
rX, rWQ, rWO, rW1, rW2, rOUT, rWS, rDBG = [S(8 + 4 * i, 4) for i in range(8)]
sPURE, sSPIN, sMSK = 90, 91, 92
sW1A, sW1B, sWOb, sW2b, sCT, sRT, sCT3, sRT3, sTMP = 93, 94, 95, 96, 97, 98, 99, 100, 101
VW1 = 240; VW2 = 244; RA1 = 248; RA2 = 249; VPU = 251; VONE = 252
VTOP = 240
A_W1 = 0; A_CS = 224; A_X = 240
MF = "v_mfma_f32_32x32x16_bf16"

def run(a, f): return f() if callable(f) else a(f)

def weave(a, main, fill, first=0, last=0):
    n = len(main) - last; k = 0
    for i, m in enumerate(main):
        run(a, m)
        if i < first or i >= n: continue
        tgt = (len(fill) * (i + 1 - first) + (n - first) - 1) // (n - first)
        while k < tgt: run(a, fill[k]); k += 1
    while k < len(fill): run(a, fill[k]); k += 1

def dma_list(a, items, vw, srd, step, toks=None, fl=""):
    F = []; g = 0; prev = None
    for it in items:
        sb, so, sl, lo, key = it
        cont = prev is not None and g < 4 and prev[0] == sb and prev[2] == sl and so == prev[1] + step and lo == prev[3] + 1024
        if not cont: g = 0
        def f(it=it, g=g):
            sb, so, sl, lo, key = it
            if g == 0: a(f"s_add_u32 m0, s{sl}, {lo}\ns_add_u32 s{sTMP}, s{sb}, {so}")
            t = a(f"buffer_load_dwordx4 v{vw+g}, {srd}, s{sTMP} offen offset:{1024*g} {fl} lds")
            if toks is not None: toks[key] = t
        F.append((g, f)); g += 1; prev = it
    return [f for g, f in F]

def lane_tr(a, v, t):
    a(f"""v_and_b32 v{v}, 16, v0
    v_lshlrev_b32 v{v}, 1, v{v}
    v_and_b32 v{t}, 1, v0
    v_lshl_or_b32 v{v}, v{t}, 4, v{v}
    v_and_b32 v{t}, 2, v0
    v_lshl_or_b32 v{v}, v{t}, 2, v{v}
    v_lshrrev_b32 v{t}, 5, v0
    v_bfe_u32 v{t+1}, v0, 2, 2
    v_lshl_or_b32 v{t}, v{t}, 3, v{t+1}""")

SRDS = [(40, 2048 * 1280), (42, 640 * 3840), (44, 640 * 1280), (48, 640 * 3456), (50, 1728 * 1280), (52, 2048 * 1280), (56, WS_GROUP), (54, 256)]
def srd(a, i):
    src, n = SRDS[i]; d = 8 + 4 * i
    if i == 6: a(f"s_lshl_b32 s3, s{sG}, 22\ns_add_u32 s{d}, s{src}, s3\ns_addc_u32 s{d+1}, s{src+1}, 0")
    else: a(f"s_mov_b64 s[{d}:{d+1}], s[{src}:{src+1}]")
def srd_const(a, i):
    d = 8 + 4 * i; a(f"s_mov_b32 s{d+2}, {SRDS[i][1]}\ns_mov_b32 s{d+3}, 0x20000")

def persist(a, cfg, T):
    R1 = cfg.get("w1rot", 0)
    a(f"""s_mul_i32 s{sRT}, s{sM}, 205
    s_lshr_b32 s{sRT}, s{sRT}, 11
    s_mul_i32 s{sCT}, s{sRT}, 10
    s_sub_u32 s{sCT}, s{sM}, s{sCT}
    s_cmp_ge_u32 s{sM}, 14
    s_cselect_b32 s{sRT3}, 1, 0
    s_mul_i32 s{sCT3}, s{sRT3}, 14
    s_sub_u32 s{sCT3}, s{sM}, s{sCT3}
    s_lshl_b32 s{sCT3}, s{sCT3}, 2
    s_add_u32 s{sCT3}, s{sCT3}, s{sW}
    s_lshl_b32 s{sW1A}, s{sCT3}, 6
    s_cmp_ge_u32 s{sCT3}, 54
    s_cselect_b32 s{sW1A}, {BIG}, s{sW1A}
    s_mul_i32 s3, s{sRT3}, {R1*320*3456}
    s_sub_u32 s{sW1B}, s{sW1A}, s3
    s_add_u32 s{sW1A}, s{sW1A}, s3
    s_lshl_b32 s3, s{sCT}, 7
    s_mul_i32 s{sWOb}, s{sW}, {160*1280}
    s_add_u32 s{sWOb}, s{sWOb}, s3
    s_cmp_ge_u32 s{sM}, 20
    s_cselect_b32 s{sWOb}, {BIG}, s{sWOb}
    s_mul_i32 s{sW2b}, s{sW}, {432*1280}
    s_add_u32 s{sW2b}, s{sW2b}, s3""")
    a(f"""v_lshrrev_b32 v{T}, 2, v0
    v_mul_u32_u24 v{T}, 3456, v{T}
    v_and_b32 v{T+1}, 3, v0
    v_lshl_add_u32 v{VW1}, v{T+1}, 4, v{T}""")
    for i in range(1, 4): a(f"v_add_u32 v{VW1+i}, {i*(16*3456-1024)}, v{VW1}")
    a(f"""v_lshrrev_b32 v{T}, 3, v0
    v_mul_u32_u24 v{VW2}, 1280, v{T}
    v_and_b32 v{T+1}, 7, v0
    v_bfe_u32 v{T}, v0, 4, 1
    v_lshlrev_b32 v{T}, 2, v{T}
    v_xor_b32 v{T+1}, v{T+1}, v{T}
    v_lshl_add_u32 v{VW2}, v{T+1}, 4, v{VW2}""")
    for i in range(1, 4): a(f"v_add_u32 v{VW2+i}, {i*(10240-1024)}, v{VW2}")
    lane_tr(a, RA1, T)
    a(f"""v_lshl_add_u32 v{RA2}, v{T}, 7, v{RA1}
    v_lshl_add_u32 v{RA1}, v{T}, 6, v{RA1}
    v_lshrrev_b32 v{T+1}, 1, v{T+1}
    v_lshl_add_u32 v{RA2}, v{T+1}, 6, v{RA2}""")

def w1_items(J0, n, sl, lo):
    return [((sW1A if J < 20 else sW1B), J * 16 * 3456, sl, lo + (J - J0) * 1024, ("w1", J)) for J in range(J0, J0 + n)]

def w1_take(a, toks, J0, n, vaddr, off, ONE):
    mf = []
    for J in range(J0, J0 + n):
        a.wait(toks[("w1", J)])
        for e in range(2): a(f"ds_read_b64_tr_b16 {AG(A_W1+4*J+2*e,2)}, v{vaddr} offset:{off+(J-J0)*1024+e*256}")
        mf.append(f"{MF} {AG(A_CS,16)}, {AG(A_W1+4*J,4)}, {V(ONE,4)}, {0 if J == 0 else AG(A_CS,16)}")
        if len(mf) > 4: a(mf.pop(0))
    for m in mf: a(m)

def stats_issue(a, X, vo):
    a(f"""s_lshl_b32 s58, s{sW}, 5
    s_add_u32 s58, s58, s{sM}
    s_lshl_b32 s59, s{sG}, 6
    s_add_u32 s59, s59, s58
    s_sub_u32 s59, s59, 4
    v_lshrrev_b32 v{vo+1}, 4, v0
    v_mul_u32_u24 v{vo}, 1280, v{vo+1}
    v_and_b32 v{X}, 15, v0
    v_lshl_add_u32 v{vo}, v{X}, 4, v{vo}
    s_mul_i32 s3, s59, 5120
    s_cmp_lt_i32 s59, 0
    s_cselect_b32 s59, {BIG}, s3""")
def stats_loads(a, X, vo):
    L = a.lab("Ls"); a(f"s_cmp_ge_u32 s58, 68\ns_cbranch_scc1 {L}"); a.cond_begin()
    for j in range(5): a(f"buffer_load_dwordx4 {V(X+4*j,4)}, v{vo}, {rX}, s59 offen offset:{256*j}")
    a.cond_end(); a(f"{L}:")
def stats_comp(a, X, vo, T, nlater):
    L = a.lab("Ls"); a(f"s_cmp_ge_u32 s58, 68\ns_cbranch_scc1 {L}"); a.cond_begin()
    a(f"s_mov_b32 s59, 0x3f803f80\ns_waitcnt vmcnt({nlater})")
    for j in range(20):
        a(f"v_dot2_f32_bf16 v{T}, v{X+j}, s59, {0 if j == 0 else V(T)}\nv_dot2_f32_bf16 v{T+1}, v{X+j}, v{X+j}, {0 if j == 0 else V(T+1)}")
    for d in ("quad_perm:[1,0,3,2]", "quad_perm:[2,3,0,1]", "row_half_mirror", "row_mirror"):
        for q in (0, 1): a(f"v_add_f32_dpp v{T+q}, v{T+q}, v{T+q} {d} row_mask:0xf bank_mask:0xf")
    a(f"""v_mul_f32 v{T}, {f2u(-1/640)}, v{T}
    v_mul_f32 v{T+1}, {f2u(1/640)}, v{T+1}
    v_fma_f32 v{T+1}, -v{T}, v{T}, v{T+1}
    v_max_f32 v{T+1}, 0, v{T+1}
    v_add_f32 v{T+1}, {f2u(1e-5)}, v{T+1}
    v_rsq_f32 v{T+4}, v{T+1}
    v_mov_b32 v{T+6}, s{sTAG}
    v_mov_b32 v{T+7}, s{sTAG}
    v_mul_f32 v{T+5}, v{T}, v{T+4}
    v_lshlrev_b32 v{vo+1}, 4, v{vo+1}
    s_lshl_b32 s58, s58, 6
    s_add_u32 s58, s58, {W_ST1}
    s_mov_b32 exec_lo, 0x00010001
    s_mov_b32 exec_hi, 0x00010001
    buffer_store_dwordx4 {V(T+4,4)}, v{vo+1}, {rWS}, s58 offen sc1
    s_mov_b64 exec, -1""")
    a.cond_end(); a(f"{L}:")

def st1(a, cfg, X, vo):
    ts = cfg["ts"]
    NS = 4; HALO = NS * 32768; HST = 2176
    vr = Regs("v", 24, VTOP)
    ACC = vr.get(80, 4)
    BF = [vr.get(20, 4) for _ in range(2)]; AF = [vr.get(4, 4) for _ in range(2)]
    VX = vr.get(4); VW = vr.get(4); VH = vr.get()
    RB = [vr.get(4) for _ in range(2)]; RA = [vr.get() for _ in range(2)]; RH = vr.get(4)
    T = vr.get(8, 4); CS = X; ST = vr.get(20, 4); PK = vr.get(16, 4); VS = vr.get(5)
    s1CT, s1RT, sXO, sWO_, sHO, sKC, sM0, sT, sORD, sROT = 40, 41, 42, 43, 44, 45, 46, 47, 56, 48
    rot = cfg.get("rot", 0)
    ords = cfg.get("ord", (list(range(10)), list(range(10))))
    pk = lambda o: sum(v << (4 * i) for i, v in enumerate(o))
    a(f"""s_lshr_b32 s{s1CT}, s{sM}, 1
    s_and_b32 s{s1RT}, s{sM}, 1""")
    a(f"""v_lshrrev_b32 v{T}, 3, v0
    s_lshl_b32 s{sT}, s{sW}, 5
    v_add_u32 v{T+1}, s{sT}, v{T}
    v_mul_u32_u24 v{T+1}, 1280, v{T+1}
    v_lshrrev_b32 v{T+2}, 4, v0
    v_and_b32 v{T+3}, 7, v0
    v_xor_b32 v{T+3}, v{T+3}, v{T+2}
    v_lshl_add_u32 v{VX}, v{T+3}, 4, v{T+1}
    v_xor_b32 v{T+4}, 64, v{VX}
    v_add_u32 v{VX+1}, {10240-1024}, v{T+4}
    v_add_u32 v{VX+2}, {20480-2048}, v{VX}
    v_add_u32 v{VX+3}, {30720-3072}, v{T+4}
    s_and_b32 s{sT}, s{sW}, 1
    s_lshl_b32 s{sT+1}, s{sT}, 3
    v_add_u32 v{T+1}, s{sT+1}, v{T}
    v_mul_u32_u24 v{T+1}, 1280, v{T+1}
    v_lshl_add_u32 v{VH}, v{T+3}, 4, v{T+1}
    s_lshl_b32 s{sT}, s{sT}, 6
    v_xor_b32 v{VH}, s{sT}, v{VH}
    s_lshl_b32 s{sT}, s{sW}, 4
    v_add_u32 v{T+1}, s{sT}, v{T+2}
    v_mul_u32_u24 v{T+1}, 3840, v{T+1}
    v_and_b32 v{T+3}, 15, v0
    v_lshlrev_b32 v{T+2}, 2, v{T+2}
    v_xor_b32 v{T+3}, v{T+3}, v{T+2}
    v_lshl_add_u32 v{VW}, v{T+3}, 4, v{T+1}""")
    for i in range(1, 4): a(f"v_add_u32 v{VW+i}, {i*(4*3840-1024)}, v{VW}")
    a(f"""s_lshl_b32 s{sXO}, s{sG}, 8
    s_lshl_b32 s{sT}, s{s1RT}, 7
    s_add_u32 s{sXO}, s{sXO}, s{sT}
    s_mul_i32 s{sXO}, s{sXO}, 1280
    s_sub_u32 s{sHO}, s{sXO}, {16*1280}
    s_cmp_eq_u32 s{sG}, 0
    s_cselect_b32 s{sHO}, {BIG}, s{sHO}
    s_lshl_b32 s{sWO_}, s{s1CT}, 8
    s_mul_i32 s{sROT}, s{s1CT}, {rot}
    s_mul_i32 s{sT}, s{sROT}, 205
    s_lshr_b32 s{sT}, s{sT}, 11
    s_mul_i32 s{sT}, s{sT}, 10
    s_sub_u32 s{sROT}, s{sROT}, s{sT}
    s_mov_b32 s{sORD}, {pk(ords[0]) & 0xffffffff}
    s_mov_b32 s{sORD+1}, {pk(ords[0]) >> 32}
    s_cmp_eq_u32 s{s1RT}, 1
    s_cselect_b32 s{sORD}, {pk(ords[1]) & 0xffffffff}, s{sORD}
    s_cselect_b32 s{sORD+1}, {pk(ords[1]) >> 32}, s{sORD+1}
    s_lshl_b32 s{sM0}, s{sW}, 12
    s_lshl_b32 s49, s{sW}, 10
    s_lshr_b32 s{sT}, s{sW}, 1
    s_or_b32 s50, s{sT}, s{s1RT}""")
    toks = {}
    def dma_stage(s):
        sl = (s % NS) * 32768
        F = []
        def f1():
            a(f"""s_and_b32 s{sKC}, s{sORD}, 15
            s_lshr_b64 s[{sORD}:{sORD+1}], s[{sORD}:{sORD+1}], 4
            s_add_u32 s{sKC}, s{sKC}, s{sROT}
            s_cmp_ge_u32 s{sKC}, 10
            s_cselect_b32 s51, 10, 0
            s_sub_u32 s{sKC}, s{sKC}, s51""")
            a(f"s_add_u32 m0, s{sM0}, {sl+16384}\ns_mul_i32 s54, s{sKC}, {64*3840}\ns_add_u32 s54, s54, s{sWO_}")
            a(f"buffer_load_dwordx4 v{VW}, {rWQ}, s54 offen lds")
        F.append(f1)
        for i in range(1, 4): F.append(f"buffer_load_dwordx4 v{VW+i}, {rWQ}, s54 offen offset:{1024*i} lds")
        def fh():
            a(f"s_lshl_b32 s51, s{sKC}, 7")
            L = a.lab("Lh")
            a(f"s_cmp_lg_u32 s50, 0\ns_cbranch_scc1 {L}"); a.cond_begin()
            a(f"s_add_u32 m0, s49, {HALO + s*HST}\ns_add_u32 s53, s51, s{sHO}")
            a(f"buffer_load_dwordx4 v{VH}, {rX}, s53 offen lds")
            a.cond_end(); a(f"{L}:")
        F.append(fh)
        def f0():
            a(f"s_add_u32 m0, s{sM0}, {sl}\ns_add_u32 s52, s51, s{sXO}")
            a(f"buffer_load_dwordx4 v{VX}, {rX}, s52 offen lds")
        F.append(f0)
        for i in range(1, 3): F.append(f"buffer_load_dwordx4 v{VX+i}, {rX}, s52 offen offset:{1024*i} lds")
        def f2(): toks[s] = a(f"buffer_load_dwordx4 v{VX+3}, {rX}, s52 offen offset:3072 lds")
        F.append(f2)
        return F
    cfg["early"]()
    NI = cfg.get("ninit", 2)
    for s in range(NI):
        for f in dma_stage(s): run(a, f)
    ts("s1.iss")
    cfg["late"]()
    a(f"""v_and_b32 v{T}, 31, v0
    v_lshrrev_b32 v{T+1}, 5, v0
    v_bfe_u32 v{T+2}, v0, 1, 3
    v_xor_b32 v{T+2}, v{T+1}, v{T+2}
    v_lshlrev_b32 v{T+2}, 4, v{T+2}
    v_lshl_add_u32 v{RB[0]}, v{T}, 7, v{T+2}
    v_bfe_u32 v{T+2}, v0, 2, 3
    v_xor_b32 v{T+2}, v{T+1}, v{T+2}
    v_lshlrev_b32 v{T+2}, 4, v{T+2}
    v_lshrrev_b32 v{T+3}, 1, v{T}
    v_lshl_add_u32 v{T+2}, v{T+3}, 7, v{T+2}
    v_add_u32 v{T+2}, {HALO}, v{T+2}
    v_lshlrev_b32 v{VS+2}, 4, v{T}
    v_lshlrev_b32 v{VS+3}, 4, v{T+3}
    v_mul_u32_u24 v{T+1}, {QCS}, v{T+1}
    v_add_u32 v{VS}, v{VS+2}, v{T+1}
    v_add_u32 v{VS+1}, {2*QCS}, v{VS}
    v_add_u32 v{VS+4}, v{VS+3}, v{T+1}
    s_mov_b32 vcc_lo, 0x55555555
    s_mov_b32 vcc_hi, 0x55555555
    v_mov_b32 v{T+3}, {HALO+2048}""")
    for j in range(1, 4): a(f"v_xor_b32 v{RB[0]+j}, {32*j}, v{RB[0]}")
    for j in range(4): a(f"v_xor_b32 v{RH+j}, {32*j}, v{T+2}\nv_cndmask_b32 v{RH+j}, v{RH+j}, v{T+3}, vcc")
    for j in range(4): a(f"v_add_u32 v{RB[1]+j}, 0x10000, v{RB[0]+j}")
    lane_tr(a, RA[0], T)
    a(f"""v_lshl_add_u32 v{RA[0]}, v{T}, 8, v{RA[0]}
    v_xor_b32 v{T+1}, s{sW}, v{T+1}
    v_lshl_add_u32 v{RA[0]}, v{T+1}, 6, v{RA[0]}
    v_add_u32 v{RA[1]}, 0x10000, v{RA[0]}""")
    a(f"v_mul_u32_u24 v{T}, {HST}, v0\nv_add_u32 v{T}, {HALO+2048}, v{T}")
    for q in range(4): a(f"v_mov_b32 v{T+4+q}, 0x3f803f80")
    a(f"s_mov_b64 exec, 0x3ff\nds_write_b128 v{T}, {V(T+4,4)}\ns_mov_b64 exec, -1")
    persist(a, cfg, T)
    sync_post(a)
    stats_comp(a, X, vo, PK, 8 * NI)
    a(f"""s_lshl_b32 s55, s{s1RT}, 11
    s_lshl_b32 s58, s{s1CT}, 2
    s_add_u32 s58, s58, s{sW}
    s_mul_i32 s58, s58, {4*QCS}
    s_add_u32 s59, s58, s55
    s_add_u32 s59, s59, {W_QKV+256}
    s_add_u32 s55, s55, {W_ST1+256}
    s_lshl_b32 s47, s{sW}, 13""")
    def reads(s, j):
        p = (s * 4 + j) & 1; sl = s % NS; b = sl // 2; o = (sl & 1) * 32768
        F = [f"ds_read_b64_tr_b16 {V(AF[p]+2*e,2)}, v{RA[b]} offset:{o+16384+j*4096+e*1024}" for e in range(2)]
        F += [f"ds_read_b128 {V(BF[p]+4*t,4)}, v{RB[b]+j} offset:{o+t*4096}" for t in range(4)]
        F += [f"ds_read_b128 {V(BF[p]+16,4)}, v{RH+j} offset:{s*HST}"]
        return F
    def stat_loads():
        F = [f"buffer_load_dwordx4 {V(ST+4*t,4)}, v{VS+2}, {rWS}, s55 offen offset:{512*t} sc1" for t in range(4)]
        F.append(f"s_mov_b32 s3, {W_ST1}\nbuffer_load_dwordx4 {V(ST+16,4)}, v{VS+3}, {rWS}, s3 offen sc1")
        return F
    ts("s1.pre")
    a.wait(toks[0]); a("s_waitcnt lgkmcnt(0)\ns_barrier")
    ts("s1.bar0")
    for f in reads(0, 0): a(f)
    pend = []
    for s in range(NI, NS): pend += dma_stage(s)
    NA = cfg.get("w1a", 24); wt = cfg["wt"]
    for s in range(10):
        for j in range(4):
            p = (s * 4 + j) & 1
            mf = [f"{MF} {V(ACC+16*t,16)}, {V(AF[p],4)}, {V(BF[p]+4*t,4)}, {0 if s + j == 0 else V(ACC+16*t,16)}" for t in range(5)]
            fill = []
            if j == 3 and s < 9:
                def bar(s=s):
                    a.wait(toks[s + 1]); a("s_waitcnt lgkmcnt(0)\ns_barrier")
                fill.append(bar)
                if s + NS < 10: pend += dma_stage(s + NS)
                else:
                    r = s + NS - 10
                    if r == 0: pend += stat_loads() + [lambda: purity_load(a)]
                    n = max(0, min(8, NA - 8 * r))
                    pend += dma_list(a, w1_items(8 * r, n, 47, (s % NS) * 32768), VW1, rW1, 16 * 3456, wt)
            if j < 3: fill += reads(s, j + 1)
            elif s < 9: fill += reads(s + 1, 0)
            k = min(cfg.get("dper", 3) + (1 if len(pend) > 12 else 0), len(pend)); fill += pend[:k]; pend = pend[k:]
            weave(a, mf, fill)
        if s in (0, 1, 2, 3, 5, 7, 9): ts(f"s1.k{s}")
    assert not pend
    Lc = a.lab("Lc"); Lo = a.lab("Lo")
    a(f"v_cmp_ne_u32 vcc, s{sTAG}, v{ST+18}\n{Lc}:")
    for t in range(4): a(f"v_cmp_ne_u32 s[52:53], s{sTAG}, v{ST+4*t+2}\ns_or_b64 vcc, vcc, s[52:53]")
    a(f"s_cbranch_vccz {Lo}"); a.cond_begin()
    spin_guard(a, cfg["end"])
    for f in stat_loads(): a(f)
    a(f"s_waitcnt vmcnt(0)\nv_cmp_ne_u32 vcc, s{sTAG}, v{ST+18}\ns_branch {Lc}")
    a.cond_end(); a(f"{Lo}:")
    ts("s1.stat")
    for i in range(16): a(f"v_mov_b32_dpp v{CS+i}, v{ACC+64+i} quad_perm:[0,0,2,2] row_mask:0xf bank_mask:0xf")
    for t in range(5):
        if t == 4:
            L = a.lab("Lh"); a(f"s_cmp_lg_u32 s{s1RT}, 0\ns_cbranch_scc1 {L}"); a.cond_begin()
        pk_ = PK + 8 * (t & 1)
        for i in range(0, 16, 2):
            tt = T + (i & 6)
            a(f"v_pk_mul_f32 {V(tt,2)}, {V(CS+i,2)}, {V(ST+4*t,2)} op_sel:[0,1] op_sel_hi:[1,1]")
            a(f"v_pk_fma_f32 {V(tt,2)}, {V(ACC+16*t+i,2)}, {V(ST+4*t,2)}, {V(tt,2)} op_sel:[0,0,0] op_sel_hi:[1,0,1]")
            a(f"v_cvt_pk_bf16_f32 v{pk_+i//2}, v{tt}, v{tt+1}")
        if t < 4:
            for o in range(2): a(f"buffer_store_dwordx4 {V(pk_+4*o,4)}, v{VS+o}, {rWS}, s59 offen offset:{512*t}")
        else:
            a(f"s_add_u32 s59, s58, {2*QCS}\ns_mov_b32 exec_lo, 0xaaaaaaaa\ns_mov_b32 exec_hi, 0xaaaaaaaa")
            for o in range(2): a(f"buffer_store_dwordx4 {V(pk_+4*o,4)}, v{VS+4}, {rWS}, s{58+o} offen")
            a("s_mov_b64 exec, -1")
            a.cond_end(); a(f"{L}:")
    ts("s1.end")

def bubble1(a, cfg):
    NA = cfg.get("w1a", 24)
    if not NA: return
    a(f"s_lshl_b32 s47, s{sW}, 13\nv_add_u32 v1, s47, v{RA1}\nv_add_u32 v2, 0x10000, v1")
    for q in range(4): a(f"v_mov_b32 v{4+q}, 0x3f803f80")
    for r in range(3):
        n = max(0, min(8, NA - 8 * r))
        if n: w1_take(a, cfg["wt"], 8 * r, n, 2 if r < 2 else 1, 32768 if r == 1 else 0, 4)

L_KV = 80 * K; L_W1B = 112 * K
def st_attn_pre(a, cfg):
    vr = Regs("v", 8, VTOP)
    c = dict(Q=vr.get(12, 4), K=vr.get(96, 4), V=vr.get(96, 4), LG=vr.get(8, 4), T=vr.get(8, 4))
    c["VA"], c["VH"], c["VD"], c["LA"], c["LH"], c["VO"], c["VR"] = [vr.get() for _ in range(7)]
    T = c["T"]
    a(f"""s_lshr_b32 s40, s{sM}, 2
    s_and_b32 s41, s{sM}, 3
    s_lshl_b32 s41, s41, 2
    s_add_u32 s41, s41, s{sW}
    s_mul_i32 s42, s41, {5*QCS}
    s_lshl_b32 s43, s40, 9
    s_add_u32 s42, s42, s43
    s_lshl_b32 s44, s{sW}, 13
    s_add_u32 s44, s44, {L_KV}
    v_lshlrev_b32 v{c['VD']}, 4, v0
    v_and_b32 v{T}, 15, v0
    v_lshrrev_b32 v{T+1}, 5, v0
    v_and_b32 v{T+2}, 31, v0
    v_mul_u32_u24 v{T+2}, 1280, v{T+2}
    v_lshl_add_u32 v{c['VR']}, v{T+1}, 4, v{T+2}
    v_lshl_add_u32 v{T}, v{T+1}, 4, v{T}
    v_lshlrev_b32 v{T+1}, 4, v{T}
    v_bfe_u32 v{T+2}, v0, 4, 1
    v_mul_u32_u24 v{T+3}, {3*QCS}, v{T+2}
    v_add_u32 v{c['VA']}, v{T+3}, v{T+1}
    v_lshl_add_u32 v{c['VH']}, v{T+2}, 3, v{T+1}
    v_mul_u32_u24 v{T+3}, {3*768}, v{T+2}
    v_add3_u32 v{c['LA']}, v{T+3}, v{T+1}, s44
    v_add_u32 v{c['LH']}, s44, v{c['VH']}
    v_mul_u32_u24 v{T+3}, {3*4096}, v{T+2}
    v_add_u32 v{c['VO']}, v{T+3}, v{T+1}
    s_mul_i32 s52, s41, {5*4096}
    s_add_u32 s52, s52, s43
    s_add_u32 s52, s52, {W_O}
    s_add_u32 s53, s52, 4096
    s_add_u32 s54, s52, 8192
    s_or_b32 s48, s40, s{sG}
    s_lshl_b32 s55, s{sG}, 1
    s_add_u32 s55, s55, s{sRT}
    s_lshl_b32 s55, s55, 2
    s_add_u32 s55, s55, s{sW}
    s_mul_i32 s55, s55, 40960
    s_lshl_b32 s56, s{sCT}, 7
    s_add_u32 s55, s55, s56
    s_cmp_ge_u32 s{sM}, 20
    s_cselect_b32 s55, {BIG}, s55
    s_mul_i32 s56, s{sW}, 20480
    s_mul_i32 s57, s{sW}, 12288
    s_and_b32 s45, s{sM}, 3
    s_lshl_b32 s45, s45, 1
    s_lshl_b32 s{sMSK}, {0b0101 | 0b0101 << 10 | 0b0101 << 20}, s45
    s_lshl_b32 s45, s{sMSK}, 1
    s_or_b32 s46, s45, s{sMSK}
    s_cmp_ge_u32 s40, 4
    s_cselect_b32 s{sMSK}, s45, s{sMSK}
    s_cmp_eq_u32 s40, 4
    s_cselect_b32 s{sMSK}, s46, s{sMSK}""")
    return c

def st_attn(a, cfg, c):
    ts = cfg["ts"]
    Q, Kk, Vv, LG, T = c["Q"], c["K"], c["V"], c["LG"], c["T"]; O = Kk + 20
    VA, VHh, VD, LA, LH, VO, VR = [c[k] for k in ("VA", "VH", "VD", "LA", "LH", "VO", "VR")]
    tk = {}
    def kv(lo):
        a("s_mov_b32 exec_hi, 0xffff")
        for cc in range(lo, lo + 5):
            ch = 80 + cc if cc < 5 else 155 + cc
            a(f"s_add_u32 m0, s44, {cc*768}\ns_add_u32 s45, s42, {W_QKV + ch*QCS}")
            tk[lo] = a(f"buffer_load_dwordx4 v{VD}, {rWS}, s45 offen sc1 lds")
        a("s_mov_b64 exec, -1")
    kv(0)
    a(f"""s_add_u32 s45, s42, {W_QKV+256}
    s_add_u32 s46, s42, {W_QKV+256+QCS}
    s_add_u32 s47, s42, {W_QKV+256+2*QCS}
    buffer_load_dwordx4 {V(Q,4)}, v{VA}, {rWS}, s45 offen sc1
    buffer_load_dwordx4 {V(Q+4,4)}, v{VA}, {rWS}, s46 offen sc1
    buffer_load_dwordx2 {V(Q+8,2)}, v{VHh}, {rWS}, s47 offen sc1""")
    kv(5)
    NA = cfg.get("w1a", 24); NB = cfg.get("w1b", 12)
    fill = [f"buffer_load_dwordx4 {AG(A_X+4*i,4)}, v{VR}, {rX}, s55 offen offset:{32*i}" for i in range(4)]
    fill += dma_list(a, [(sWOb, i * 10240, 56, i * 1024, ("wo", i)) for i in range(20)], VW2, rWO, 10240, cfg["wt"])
    fill += dma_list(a, w1_items(NA, NB, 57, L_W1B), VW1, rW1, 16 * 3456, cfg["wt"])
    n0 = cfg.get("at0", 4)
    for f in fill[:n0]: run(a, f)
    fill = fill[n0:]
    ts("at.iss")
    a.wait(tk[0])
    ts("at.k")
    def rd(base, w, sec):
        o = 32 + (7 - w) * 32 + sec * 3840
        return [f"ds_read_b128 {V(base+12*w,4)}, v{LA} offset:{o}", f"ds_read_b128 {V(base+12*w+4,4)}, v{LA} offset:{o+768}", f"ds_read_b64 {V(base+12*w+8,2)}, v{LH} offset:{o+1536}"]
    M1 = []
    for w in range(4): M1 += rd(Kk, w, 0)
    for w0 in range(0, 8, 2):
        if w0 + 4 < 8: M1 += rd(Kk, w0 + 4, 0) + rd(Kk, w0 + 5, 0)
        else:
            if w0 == 4: M1.append(lambda: a.wait(tk[5]))
            M1 += rd(Vv, w0 - 4, 1) + rd(Vv, w0 - 3, 1)
        for j in range(10):
            for w in (w0, w0 + 1):
                M1.append(f"v_dot2_f32_bf16 v{LG+w}, v{Q+j}, v{Kk+12*w+j}, {0 if j == 0 else V(LG+w)}")
    for w in range(4, 8): M1 += rd(Vv, w, 1)
    def mask():
        L = a.lab("Lm"); a(f"s_cmp_lg_u32 s48, 0\ns_cbranch_scc1 {L}"); a.cond_begin()
        a(f"v_mov_b32 v{T+4}, {f2u(-1e30)}")
        for w in range(1, 8): a(f"v_cmp_le_u32 vcc, {2*w}, v{T}\nv_cndmask_b32 v{LG+w}, v{T+4}, v{LG+w}, vcc")
        a.cond_end(); a(f"{L}:")
    M1.append(mask)
    cs = 20 ** -0.5 * 1.4426950408889634
    M1 += f"""v_max3_f32 v{T+4}, v{LG}, v{LG+1}, v{LG+2}
    v_max3_f32 v{T+5}, v{LG+3}, v{LG+4}, v{LG+5}
    v_max3_f32 v{T+4}, v{T+4}, v{LG+6}, v{LG+7}
    s_mov_b32 s49, {f2u(cs)}
    v_max_f32 v{T+4}, v{T+4}, v{T+5}
    v_mul_f32 v{T+4}, {f2u(-cs)}, v{T+4}""".split("\n")
    for w in range(8): M1.append(f"v_fma_f32 v{LG+w}, v{LG+w}, s49, v{T+4}")
    for w in range(8): M1.append(f"v_exp_f32 v{LG+w}, v{LG+w}")
    M1 += f"""v_pk_add_f32 {V(T+4,2)}, {V(LG,2)}, {V(LG+2,2)}
    v_pk_add_f32 {V(T+6,2)}, {V(LG+4,2)}, {V(LG+6,2)}
    v_pk_add_f32 {V(T+4,2)}, {V(T+4,2)}, {V(T+6,2)}
    v_add_f32 v{T+4}, v{T+4}, v{T+5}
    v_rcp_f32 v{T+4}, v{T+4}
    s_mov_b32 s50, 0x05040100
    s_mov_b32 s51, 0x07060302""".split("\n")
    for w in range(0, 8, 2): M1.append(f"v_pk_mul_f32 {V(LG+w,2)}, {V(LG+w,2)}, {V(T+4,2)} op_sel_hi:[1,0]")
    for w in range(0, 8, 2): M1.append(f"v_cvt_pk_bf16_f32 v{T+w//2}, v{LG+w}, v{LG+w+1}")
    for w in range(0, 8, 2):
        for j in range(10):
            M1 += [f"v_perm_b32 v{Kk+2*j}, v{Vv+12*(w+1)+j}, v{Vv+12*w+j}, s50", f"v_perm_b32 v{Kk+2*j+1}, v{Vv+12*(w+1)+j}, v{Vv+12*w+j}, s51"]
        for j in range(20):
            M1.append(f"v_dot2_f32_bf16 v{O+j}, v{Kk+j}, v{T+w//2}, {0 if w == 0 else V(O+j)}")
    for j in range(10): M1.append(f"v_cvt_pk_bf16_f32 v{Q+j}, v{O+2*j}, v{O+2*j+1}")
    weave(a, M1, fill, first=12, last=cfg.get("atlast", 150))
    ts("at.cmp")
    a(f"""buffer_store_dwordx4 {V(Q,4)}, v{VO}, {rWS}, s52 offen
    buffer_store_dwordx4 {V(Q+4,4)}, v{VO}, {rWS}, s53 offen
    buffer_store_dwordx2 {V(Q+8,2)}, v{VHh}, {rWS}, s54 offen""")

def bubble2(a, cfg):
    NA = cfg.get("w1a", 24); NB = cfg.get("w1b", 12)
    if not NB: return
    a(f"s_mul_i32 s47, s{sW}, 12288\ns_add_u32 s47, s47, {L_W1B}\nv_add_u32 v1, s47, v{RA1}")
    for q in range(4): a(f"v_mov_b32 v{4+q}, 0x3f803f80")
    w1_take(a, cfg["wt"], NA, NB, 1, 0, 4)

L_W1C = 80 * K
L_STG = 120 * K
L_STT = 152 * K
def w1c_dma(a, cfg):
    NA = cfg.get("w1a", 24); NB = cfg.get("w1b", 12); NC = 40 - NA - NB
    assert 0 <= NC <= 10
    return dma_list(a, w1_items(NA + NB, NC, 57, L_W1C), VW1, rW1, 16 * 3456, cfg["wt"])

def st_k2(a, cfg):
    ts = cfg["ts"]
    vr = Regs("v", 8, VTOP)
    ACC = vr.get(32, 4); B = vr.get(160, 4); NAF = 3; AF = vr.get(8 * NAF, 4); RA = vr.get(4); VB = vr.get(); VSt = vr.get(); T = vr.get(4, 4)
    a(f"""v_mov_b32 v{RA}, v{RA2}
    v_xor_b32 v{RA+1}, 64, v{RA2}
    v_add_u32 v{RA+2}, 40960, v{RA}
    v_add_u32 v{RA+3}, 40960, v{RA+1}
    v_and_b32 v{T}, 31, v0
    v_lshrrev_b32 v{T+1}, 5, v0
    v_lshlrev_b32 v{VSt}, 3, v{T}
    v_lshlrev_b32 v{T}, 4, v{T}
    v_lshl_add_u32 v{VB}, v{T+1}, 12, v{T}
    s_lshl_b32 s40, s{sRT}, 2
    s_add_u32 s40, s40, s{sW}
    s_lshl_b32 s41, s40, 9
    s_add_u32 s42, s41, {W_O}
    s_lshl_b32 s43, s{sCT}, 15
    s_add_u32 s43, s43, s41
    s_add_u32 s43, s43, {W_H}
    s_lshl_b32 s44, s{sCT}, 11
    s_lshl_b32 s45, s40, 8
    s_add_u32 s44, s44, s45
    s_add_u32 s44, s44, {W_HS}
    s_mov_b32 s50, 0x3f803f80
    s_lshl_b32 s{sMSK}, s{sRT}, 4
    s_lshl_b32 s{sMSK}, 0xffff, s{sMSK}""")
    for i in range(16):
        a(f"v_accvgpr_read_b32 v{ACC+2*i+1}, a{A_X+i}")
    for i in range(16):
        a(f"v_lshlrev_b32 v{ACC+2*i}, 16, v{ACC+2*i+1}\nv_and_b32 v{ACC+2*i+1}, 0xffff0000, v{ACC+2*i+1}")
    def rdA(J):
        p = J % NAF
        return [f"ds_read_b64_tr_b16 {V(AF+8*p+4*cb+2*e,2)}, v{RA+cb+2*(J//20)} offset:{(J%20)*2048+e*512}" for cb in range(2) for e in range(2)]
    for J in range(NAF - 1):
        for f in rdA(J): a(f)
    await_(a, 2, cfg["end"]); ts("main.a2")
    ld = lambda J: f"s_add_u32 s46, s42, {J*8192}\nbuffer_load_dwordx4 {V(B+4*J,4)}, v{VB}, {rWS}, s46 offen sc1"
    LEAD = cfg.get("k2lead", 8)
    for J in range(LEAD): a(ld(J))
    tail = w1c_dma(a, cfg)
    for J in range(40):
        p = J % NAF
        r = rdA(J + NAF - 1) if J + NAF - 1 < 40 else []
        for cb in range(2):
            c = V(ACC + 16 * cb, 16)
            a(f"{MF} {c}, {V(AF+8*p+4*cb,4)}, {V(B+4*J,4)}, {c}")
            for f in r[2 * cb:2 * cb + 2]: a(f)
            if cb == 0:
                if J + LEAD < 40: a(ld(J + LEAD))
                elif tail: run(a, tail.pop(0))
            elif J + LEAD >= 40 and tail: run(a, tail.pop(0))
        if J in (0, 19): ts(f"k2.j{J}")
    assert not tail
    ts("k2.mm")
    for o in range(4):
        for i in range(4): a(f"v_cvt_pk_bf16_f32 v{B+4*o+i}, v{ACC+8*o+2*i}, v{ACC+8*o+2*i+1}")
        a(f"s_add_u32 s46, s43, {o*8192}\nbuffer_store_dwordx4 {V(B+4*o,4)}, v{VB}, {rWS}, s46 offen")
    for i in range(16):
        a(f"v_dot2_f32_bf16 v{T}, v{B+i}, s50, {0 if i == 0 else V(T)}\nv_dot2_f32_bf16 v{T+1}, v{B+i}, v{B+i}, {0 if i == 0 else V(T+1)}")
    for q in range(2): a(f"v_mov_b32 v{T+2+q}, v{T+q}")
    for q in range(2): a(f"v_permlane32_swap_b32 v{T+q}, v{T+2+q}")
    a(f"v_pk_add_f32 {V(T,2)}, {V(T,2)}, {V(T+2,2)}")
    a(f"s_mov_b32 exec_hi, 0\nbuffer_store_dwordx2 {V(T,2)}, v{VSt}, {rWS}, s44 offen\ns_mov_b64 exec, -1")
    ts("k2.end")

def prefetch(a, srd, sbase, n, step, v, d0):
    for i in range(n):
        a(f"s_add_u32 s3, s{sbase}, {i*step}\nbuffer_load_dword v{d0+i}, v{v}, {srd}, s3 offen")

V_W2 = 144
def w2_reg(q):
    if q < 12: return lambda o, n: AG(160 + 8 * q + o, n)
    if q < 24: return lambda o, n: V(V_W2 + 8 * (q - 12) + o, n)
    return lambda o, n: AG(8 * (q - 24) + o, n)

def st3(a, cfg):
    ts = cfg["ts"]; wt = cfg["wt"]
    NA = cfg.get("w1a", 24); NB = cfg.get("w1b", 12); NC = 40 - NA - NB; R1 = cfg.get("w1rot", 0)
    vr = Regs("v", 1, V_W2)
    RS = vr.get(2); T = vr.get(4, 4)
    CS = vr.get(16, 4); STT = vr.get(8, 4)
    VD = vr.get(4); VP = vr.get(); VS = vr.get(2); RB = vr.get(2); VL = vr.get()
    ACC = [vr.get(16, 4) for _ in range(2)]; NBF = 8; BF = vr.get(4 * NBF, 4); E = vr.get(16, 4); PK = vr.get(8, 4)
    HS = ACC[1]
    cfg["RS"] = RS
    a(f"""s_lshl_b32 s58, s{sW}, 13
    s_add_u32 s58, s58, {L_STG}""")
    def w2_dma(q): return dma_list(a, [(sW2b, (2 * q + i) * 10240, 58, (q % 4) * 2048 + i * 1024, ("w2", q)) for i in range(2)], VW2, rW2, 10240, wt)
    rtok = {}
    def w2_rd(q):
        F = [lambda: a.wait(wt[("w2", q)])]
        for cb in range(2):
            for e in range(2):
                def f(cb=cb, e=e): rtok[q] = a(f"ds_read_b64_tr_b16 {w2_reg(q)(4*cb+2*e,2)}, v{RS+cb} offset:{(q%4)*2048+e*512}")
                F.append(f)
        return F
    cfg["w2_rd"] = w2_rd
    N0 = cfg.get("w2n0", 4)
    for q in range(N0):
        for f in w2_dma(q): f()
    if NC:
        a(f"s_mul_i32 s47, s{sW}, 10240\ns_add_u32 s47, s47, {L_W1C}\nv_add_u32 v{RS}, s47, v{RA1}")
        for q in range(4): a(f"v_mov_b32 v{T+q}, 0x3f803f80")
        w1_take(a, wt, NA + NB, NC, RS, 0, T)
    a(f"""s_lshl_b32 s47, s{sW}, 5
    v_xor_b32 v{RS}, s47, v{RA2}
    v_add_u32 v{RS}, s58, v{RS}
    v_xor_b32 v{RS+1}, 64, v{RS}
    v_and_b32 v{VL}, 31, v0
    v_lshrrev_b32 v{RB}, 5, v0
    v_mul_u32_u24 v{RB+1}, {5*2048}, v{RB}
    v_lshl_add_u32 v{VP}, v{VL}, 3, v{RB+1}
    v_lshlrev_b32 v{VL}, 4, v{VL}
    v_lshl_add_u32 v{VD}, v{RB}, 12, v{VL}
    v_add_u32 v{VL}, {L_STT}, v{VL}
    v_mov_b32 v{VS}, v{VD}
    v_add_u32 v{VS+1}, 8192, v{VD}
    v_lshlrev_b32 v{RB}, 4, v0
    v_add_u32 v{RB+1}, 0x10000, v{RB}
    s_lshl_b32 s42, s{sRT3}, 11
    s_add_u32 s40, s42, {W_H}
    s_cmp_ge_u32 s{sM}, 28
    s_cselect_b32 s40, {BIG}, s40
    s_mul_i32 s41, s{sRT3}, {2*R1}
    s_add_u32 s41, s41, s{sW}
    s_and_b32 s41, s41, 3
    s_mul_i32 s43, s41, {10*8192}
    s_add_u32 s43, s43, s40
    s_mul_i32 s44, s{sW}, 10240
    s_lshl_b32 s41, s{sW}, 13
    s_add_u32 s40, s40, s41
    s_mul_i32 s41, s{sRT3}, {R1*20*8192}
    s_sub_u32 s49, s40, s41
    s_add_u32 s48, s40, s41
    s_lshl_b32 s50, s{sW}, 10
    s_lshl_b32 s45, s{sRT3}, 10
    s_lshl_b32 s41, s{sW}, 8
    s_add_u32 s45, s45, s41
    s_add_u32 s45, s45, {W_HS}
    s_lshl_b32 s47, s{sCT3}, 14
    s_add_u32 s47, s47, s42
    s_add_u32 s47, s47, {W_H1}
    s_cmp_ge_u32 s{sCT3}, 54
    s_cselect_b32 s47, {BIG}, s47
    s_lshl_b32 s51, s{sW}, 9
    s_mul_i32 s{sMSK}, s{sRT3}, 10
    s_lshl_b32 s{sMSK}, 0x3ff, s{sMSK}""")
    for i in range(1, 4): a(f"v_add_u32 v{VD+i}, {i*(8192-1024)}, v{VD}")
    for i in range(16): a(f"v_accvgpr_read_b32 v{CS+i}, a{A_CS+i}")
    a("s_waitcnt lgkmcnt(0)")
    await_(a, 3, cfg["end"]); ts("main.a3")
    tk0 = {}
    for i in range(10):
        a(f"s_add_u32 m0, s50, {i*4096}\ns_add_u32 s46, s{48 if i < 5 else 49}, {i*32768}")
        tk0[i] = a(f"buffer_load_dwordx4 v{VD}, {rWS}, s46 offen sc1 lds")
    for i in range(5): a(f"s_add_u32 s46, s45, {i*2048}\nbuffer_load_dwordx2 {V(HS+2*i,2)}, v{VP}, {rWS}, s46 offen sc1")
    tkb = {}
    def dma_blk(b): return dma_list(a, [(43, i * 8192 + b * 512, 44, (b % 3) * 40960 + i * 1024, b) for i in range(10)], VD, rWS, 8192, tkb, "sc1")
    def grp(F, n):
        return [(lambda G=F[i:i + n]: [f() for f in G]) for i in range(0, len(F), n)]
    h = HS
    stat = [f"v_add_f32 v{h+q}, v{h+q}, v{h+2+q}" for q in range(2)] + [f"v_add_f32 v{h+4+q}, v{h+4+q}, v{h+6+q}" for q in range(2)]
    stat += [f"v_add_f32 v{h+q}, v{h+q}, v{h+8+q}" for q in range(2)] + [f"v_add_f32 v{h+q}, v{h+q}, v{h+4+q}" for q in range(2)]
    stat += f"""v_mov_b32 v{h+2}, v{h}
    v_mov_b32 v{h+3}, v{h+1}
    v_add_u32 v{h+8}, s51, v{VL}
    v_permlane32_swap_b32 v{h}, v{h+2}
    v_permlane32_swap_b32 v{h+1}, v{h+3}
    v_add_f32 v{h}, v{h}, v{h+2}
    v_add_f32 v{h+1}, v{h+1}, v{h+3}
    v_mul_f32 v{h+4}, {f2u(-1/640)}, v{h}
    v_mul_f32 v{h+1}, {f2u(1/640)}, v{h+1}
    v_fma_f32 v{h+1}, -v{h+4}, v{h+4}, v{h+1}
    v_max_f32 v{h+1}, 0, v{h+1}
    v_add_f32 v{h+1}, {f2u(1e-5)}, v{h+1}
    v_rsq_f32 v{h}, v{h+1}
    v_mul_f32 v{h+6}, v{h+1}, v{h}
    v_mul_f32 v{h+5}, {f2u(-1.4426950408889634)}, v{h}
    ds_write_b128 v{h+8}, {V(h+4,4)}""".split("\n")
    rt = {}
    def rd(i):
        b, J = divmod(i, 40); off = (b % 3) * 40960 + J * 1024
        rt[i] = a(f"ds_read_b128 {V(BF+4*(i%NBF),4)}, v{RB+off//65536} offset:{off%65536}")
    def epi(b, pkd=False):
        ac = ACC[b & 1]; F = []; st = STT + 4 * (b & 1)
        for hh in range(0, 16, 4):
            r = range(hh, hh + 4)
            if pkd:
                r2 = (hh, hh + 2)
                F += [f"v_pk_fma_f32 {V(ac+i,2)}, {V(CS+i,2)}, {V(st,2)}, {V(ac+i,2)} op_sel_hi:[1,0,1]" for i in r2]
                F += [f"v_pk_mul_f32 {V(E+i,2)}, {V(ac+i,2)}, {V(st,2)} op_sel:[0,1] op_sel_hi:[1,1]" for i in r2]
                F += [f"v_exp_f32 v{E+i}, v{E+i}" for i in r]
                F += [f"v_pk_fma_f32 {V(E+i,2)}, {V(E+i,2)}, {V(st+2,2)}, {V(st+2,2)} op_sel_hi:[1,0,0]" for i in r2]
                F += [f"v_rcp_f32 v{E+i}, v{E+i}" for i in r]
                F += [f"v_pk_mul_f32 {V(E+i,2)}, {V(E+i,2)}, {V(ac+i,2)}" for i in r2]
            else:
                F += [f"v_fma_f32 v{ac+i}, v{st}, v{CS+i}, v{ac+i}" for i in r]
                F += [f"v_mul_f32 v{E+i}, v{st+1}, v{ac+i}" for i in r]
                F += [f"v_exp_f32 v{E+i}, v{E+i}" for i in r]
                F += [f"v_fma_f32 v{E+i}, v{E+i}, v{st+2}, v{st+2}" for i in r]
                F += [f"v_rcp_f32 v{E+i}, v{E+i}" for i in r]
                F += [f"v_mul_f32 v{E+i}, v{E+i}, v{ac+i}" for i in r]
            F += [f"v_cvt_pk_bf16_f32 v{PK+i//2}, v{E+i}, v{E+i+1}" for i in (hh, hh + 2)]
            if hh & 4: F.append(f"buffer_store_dwordx4 {V(PK+4*(hh//8),4)}, v{VS+hh//8}, {rWS}, s47 offen offset:{512*b}")
        return F
    ev = {}
    def at(i, F): ev.setdefault(i, []).extend(F)
    for i, g in enumerate(grp(dma_blk(1), 4) + grp(dma_blk(2), 4)): at(2 + 5 * i if i < 3 else 21 + 5 * (i - 3), [g])
    for i, g in enumerate(grp(dma_blk(3), 4)): at(76 + 5 * i, [g])
    q0 = cfg.get("w2q0", 4); qs = cfg.get("w2qs", 6.3)
    for q in range(27):
        t = int(q0 + qs * q)
        if q < 24:
            for k, f in enumerate(w2_rd(q)): at(t + max(0, k - 1) // 2, [f])
        if q >= N0:
            tq = int(q0 + qs * (q - 4)) + 4 if q >= 4 else q
            at(tq, [(lambda q=q: (a.wait(rtok.get(q - 4)), [f() for f in w2_dma(q)]))])
    PD = 6; NF = cfg.get("s3first", 3)
    a.wait(tk0[NF - 1]); a("s_barrier")
    ts("s3.bar0")
    for i in range(PD): rd(i)
    for b in range(4):
        fill = epi(b - 1) if b else []
        k = 0
        for J in range(40):
            i = b * 40 + J
            c = V(ACC[b & 1], 16)
            if J % 2 == 0: a.wait(rt[i + 1])
            a(f"{MF} {c}, {AG(4*J,4)}, {V(BF+4*(i%NBF),4)}, {0 if J == 0 else c}")
            if i == 4 * NF - PD: a.wait(tk0[9]); a("s_barrier")
            if J == 40 - PD:
                if b < 3:
                    a.wait(tkb[b + 1])
                    if b == 0: a("s_waitcnt lgkmcnt(0)")
                    a("s_barrier")
                a(f"ds_read_b128 {V(STT+4*(b&1),4)}, v{VL} offset:{512*b}")
            if i + PD < 160: rd(i + PD)
            for f in ev.pop(i, []): run(a, f)
            if b == 0 and 12 <= J < 12 + 12:
                for f in stat[2 * (J - 12):2 * (J - 12) + 2]: a(f)
            if J >= 2:
                n = 3 if (J % 4) else 2
                for f in fill[k:k + n]: a(f)
                k += n
        for f in fill[k:]: a(f)
        ts(f"s3.b{b}")
    assert not ev, sorted(ev)
    for f in epi(3, True): a(f)
    ts("s3.end")

def st_k4(a, cfg):
    ts = cfg["ts"]
    KS = 27
    for q in range(24, 27):
        for f in cfg["w2_rd"](q): f()
    vr = Regs("v", 4, V_W2)
    ACC = [vr.get(32, 4) for _ in range(2)]; RS = vr.get(12, 4); RD = vr.get(24, 4)
    VB, VRd, VOut = [vr.get() for _ in range(3)]; VWr = vr.get(3); T = vr.get(4, 4)
    NB = 34; B0 = 24
    a(f"""v_and_b32 v{T}, 31, v0
    v_lshrrev_b32 v{T+1}, 5, v0
    v_mul_u32_u24 v{T+2}, 1280, v{T}
    v_lshl_add_u32 v{VOut}, v{T+1}, 4, v{T+2}
    v_lshlrev_b32 v{T}, 4, v{T}
    v_lshl_add_u32 v{VB}, v{T+1}, 12, v{T}
    v_lshlrev_b32 v{T}, 4, v0
    s_mul_i32 s40, s{sW}, 6144
    v_add_u32 v{VRd}, s40, v{T}""")
    for p in range(1, 4): a(f"s_xor_b32 s40, s{sW}, {p}\ns_mul_i32 s40, s40, 6144\ns_add_u32 s40, s40, {(p-1)*2048}\nv_add_u32 v{VWr+p-1}, s40, v{T}")
    a(f"""s_mul_i32 s42, s{sRT}, {96*16}
    s_mul_i32 s43, s{sW}, {KS*8192}
    s_add_u32 s43, s43, s42
    s_add_u32 s43, s43, {W_H1}
    s_lshl_b32 s44, s{sG}, 8
    s_mul_i32 s45, s{sRT}, 96
    s_add_u32 s44, s44, s45
    s_mul_i32 s44, s44, 1280
    s_lshl_b32 s45, s{sCT}, 2
    s_add_u32 s45, s45, s{sW}
    s_lshl_b32 s47, s45, 13
    s_lshl_b32 s45, s45, 5
    s_add_u32 s44, s44, s45
    s_add_u32 s45, s44, 40960
    s_add_u32 s46, s44, 81920
    s_add_u32 s47, s47, s42
    s_add_u32 s47, s47, {W_H}
    s_mov_b32 s{sMSK}, 0xfffffff
    s_cmp_eq_u32 s{sRT}, 0
    s_cselect_b32 s{sMSK}, 0x3fff, s{sMSK}
    s_cmp_eq_u32 s{sRT}, 2
    s_cselect_b32 s{sMSK}, {0x3fff << 14}, s{sMSK}
    s_cselect_b32 s46, {BIG}, s46
    s_cselect_b32 s51, {BIG}, s43
    s_cselect_b32 s52, {BIG}, s47
    s_waitcnt lgkmcnt(0)""")
    await_(a, 4, cfg["end"]); ts("main.a4")
    seq = [(tb, J) for tb in range(3) for J in range(KS)]
    def ld(i):
        tb, J = seq[i]
        return f"s_add_u32 s54, s{43 if tb < 2 else 51}, {J*8192}\nbuffer_load_dwordx4 {AG(B0+4*(i%NB),4)}, v{VB}, {rWS}, s54 offen offset:{512*tb} sc1"
    LEAD = cfg.get("k4lead", 10)
    for i in range(LEAD): a(ld(i))
    for tb in range(3): a(f"buffer_load_dwordx4 {V(RS+4*tb,4)}, v{VB}, {rWS}, s{47 if tb < 2 else 52} offen offset:{512*tb} sc1")
    def red(tb, pkd):
        ac = ACC[tb & 1]; bo = tb * 24576
        F = [f"ds_write_b128 v{VWr+p-1}, {V(ac+8*p+4*j,4)} offset:{bo+j*1024}" for p in range(1, 4) for j in range(2)]
        for i in range(4):
            F.append(f"v_lshlrev_b32 v{T}, 16, v{RS+4*tb+i}\nv_and_b32 v{T+1}, 0xffff0000, v{RS+4*tb+i}")
            F.append(f"v_pk_add_f32 {V(ac+2*i,2)}, {V(ac+2*i,2)}, {V(T,2)}" if pkd else f"v_add_f32 v{ac+2*i}, v{ac+2*i}, v{T}\nv_add_f32 v{ac+2*i+1}, v{ac+2*i+1}, v{T+1}")
        F += ["s_waitcnt lgkmcnt(0)\ns_barrier"]
        F += [f"ds_read_b128 {V(RD+8*p+4*j,4)}, v{VRd} offset:{bo+p*2048+j*1024}" for p in range(3) for j in range(2)]
        for p in range(3):
            if pkd: F += [f"v_pk_add_f32 {V(ac+i,2)}, {V(ac+i,2)}, {V(RD+8*p+i,2)}" for i in range(0, 8, 2)]
            else: F += [f"v_add_f32 v{ac+i}, v{ac+i}, v{RD+8*p+i}" for i in range(8)]
        for i in range(4): F.append(f"v_cvt_pk_bf16_f32 v{RS+4*tb+i}, v{ac+2*i}, v{ac+2*i+1}")
        F.append(f"buffer_store_dwordx4 {V(RS+4*tb,4)}, v{VOut}, {rOUT}, s{44+tb} offen")
        return F
    nl = LEAD
    for tb in range(3):
        fill = red(tb - 1, False) if tb else []
        k = 0
        for J in range(KS):
            i = tb * KS + J
            for cb in range(2):
                c = V(ACC[tb & 1] + 16 * cb, 16)
                a(f"{MF} {c}, {w2_reg(J)(4*cb,4)}, {AG(B0+4*(i%NB),4)}, {0 if J == 0 else c}")
                if J >= 1 and k < len(fill): a(fill[k]); k += 1
                if cb == 0 or nl - i < cfg.get("k4max", 16):
                    if nl < len(seq) and nl - i < NB - 1: a(ld(nl)); nl += 1
        for f in fill[k:]: a(f)
        ts(f"k4.tb{tb}")
    for f in red(2, True): a(f)
    ts("k4.end")

class Stamps:
    def __init__(self, a, on): self.a = a; self.on = on; self.n = 0; self.names = []
    def __call__(self, name="main"):
        if self.on and (name == "start" or name.split(".")[0] in self.on or name in self.on):
            assert self.n < 13
            self.a(f"s_memtime s[{64+2*self.n}:{65+2*self.n}]"); self.n += 1; self.names.append(name)
    def flush(self):
        if not self.on: return
        a = self.a
        a(f"s_memrealtime s[62:63]\ns_waitcnt lgkmcnt(0)\ns_lshl_b32 s3, s{sM}, 2\ns_add_u32 s3, s3, s{sW}\ns_lshl_b32 s3, s3, 6\ns_add_u32 s3, s3, {W_STAMP}\nv_mov_b32 v2, 0\ns_mov_b64 exec, 1")
        for i, r in enumerate([60, 62] + [64 + 2 * k for k in range(self.n)]):
            a(f"v_mov_b32 v1, s{r}\nbuffer_store_dword v1, v2, {rWS}, s3 offen offset:{4*i}")
        a("s_waitcnt vmcnt(0)")

def spin_guard(a, end):
    a(f"s_sub_u32 s{sSPIN}, s{sSPIN}, 1\ns_cbranch_scc1 {end}")

def sync_init(a):
    a(f"s_mov_b32 s3, {W_FLG}\nv_mov_b32 v254, 0")
    a(f"buffer_load_dword v255, v254, {rWS}, s3 offen sc1")

def sync_post(a):
    a(f"s_mov_b32 s{sSPIN}, 0x100000\nv_readfirstlane_b32 s{sTAG}, v255\ns_add_u32 s{sTAG}, s{sTAG}, 1")
    L = a.lab("Lp"); a(f"s_cmp_lg_u32 s{sW}, 0\ns_cbranch_scc1 {L}"); a.cond_begin()
    a(f"""s_getreg_b32 s3, hwreg(HW_REG_XCC_ID, 0, 4)
    s_or_b32 s3, s3, 0x80
    v_mov_b32 v255, s3
    s_lshl_b32 s3, s{sG}, 5
    s_add_u32 s3, s3, s{sM}
    s_mov_b64 exec, 1
    buffer_store_byte v255, v254, {rDBG}, s3 offen sc0 sc1
    s_mov_b64 exec, -1""")
    a.cond_end(); a(f"{L}:")

def purity_load(a):
    L = a.lab("Lq"); a(f"s_cmp_lg_u32 s{sW}, 0\ns_cbranch_scc1 {L}"); a.cond_begin()
    a(f"s_lshl_b32 s3, s{sG}, 5\ns_mov_b32 exec_hi, 0\nbuffer_load_ubyte v{VPU}, v0, {rDBG}, s3 offen sc0 sc1\ns_mov_b64 exec, -1")
    a.cond_end(); a(f"{L}:")

def sync_purity(a, end):
    P = a.lab("Lpp"); D = a.lab("Lpd")
    a(f"""s_getreg_b32 s{sMSK}, hwreg(HW_REG_XCC_ID, 0, 4)
    s_or_b32 s{sMSK}, s{sMSK}, 0x80
    s_lshl_b32 s3, s{sG}, 5
    s_mov_b32 exec_hi, 0
    {P}:
    v_cmp_eq_u32 vcc, 0, v{VPU}
    s_cbranch_vccz {D}""")
    spin_guard(a, end)
    a(f"""buffer_load_ubyte v{VPU}, v0, {rDBG}, s3 offen sc0 sc1
    s_waitcnt vmcnt(0)
    s_branch {P}
    {D}:
    v_cmp_ne_u32 vcc, s{sMSK}, v{VPU}
    s_cmp_eq_u64 vcc, 0
    s_cselect_b32 s{sPURE}, 1, 0
    s_mov_b64 exec, -1""")

def publish(a, stage, end, first=False, flag=True):
    a("s_waitcnt vmcnt(0) lgkmcnt(0)")
    if first:
        L = a.lab("Lb"); a(f"s_cmp_lg_u32 s{sW}, 0\ns_cbranch_scc1 {L}"); a.cond_begin()
        sync_purity(a, end)
        a.cond_end(); a(f"{L}:")
    a("s_barrier")
    if not flag: return
    L = a.lab("Lb"); L2 = a.lab("Lb"); a(f"s_cmp_lg_u32 s{sW}, 0\ns_cbranch_scc1 {L}"); a.cond_begin()
    a(f"""s_lshl_b32 s3, s{sM}, 2
    s_add_u32 s3, s3, {W_FLG + 128*stage}
    v_mov_b32 v255, s{sTAG}
    v_mov_b32 v254, 0
    s_mov_b64 exec, 1
    s_cmp_eq_u32 s{sPURE}, 0
    s_cbranch_scc1 {L2}
    buffer_store_dword v255, v254, {rWS}, s3 offen
    s_mov_b64 exec, -1
    s_branch {L}
    {L2}:
    buffer_wbl2 sc1
    s_waitcnt vmcnt(0)
    buffer_store_dword v255, v254, {rWS}, s3 offen sc0 sc1
    s_mov_b64 exec, -1""")
    a.cond_end(); a(f"{L}:")

def await_(a, stage, end):
    L = a.lab("La"); P = a.lab("Lap"); a(f"s_cmp_lg_u32 s{sW}, 0\ns_cbranch_scc1 {L}"); a.cond_begin()
    a(f"""s_mov_b32 s3, {W_FLG + 128*stage}
    v_lshlrev_b32 v254, 2, v0
    s_mov_b32 exec_lo, s{sMSK}
    s_mov_b32 exec_hi, 0
    {P}:""")
    spin_guard(a, end)
    a(f"""buffer_load_dword v255, v254, {rWS}, s3 offen sc1
    s_waitcnt vmcnt(0)
    v_cmp_ne_u32 vcc, s{sTAG}, v255
    s_cbranch_vccnz {P}
    s_mov_b64 exec, -1
    s_cmp_lg_u32 s{sPURE}, 0
    s_cbranch_scc1 {L}
    buffer_inv sc1
    s_waitcnt vmcnt(0)""")
    a.cond_end(); a(f"{L}:\ns_barrier")

def gen_P(cfg):
    a = Asm(); cfg = dict(cfg); cfg["wt"] = {}
    hdr = header() + "; @launch grid=(256,1,1) block=(256,1,1) lds=163840\n" + '.amdgcn_target "amdgcn-amd-amdhsa--gfx950"\n.text\n'
    n = NAME
    a(f".globl {n}_kernel\n.p2align 8\n.type {n}_kernel,@function\n{n}_kernel:\nLstart:")
    end = "Lend"; cfg["end"] = end
    ts = Stamps(a, cfg.get("stamps", 0)); cfg["ts"] = ts
    if ts.on: a("s_memrealtime s[60:61]")
    ts("start")
    a(f"""s_cmp_ge_u32 s2, 256
    s_cbranch_scc1 {end}
    s_load_dwordx4 s[8:11], s[0:1], 0
    s_load_dwordx2 s[32:33], s[0:1], 64
    s_load_dwordx2 s[16:17], s[0:1], 16
    s_load_dwordx4 s[20:23], s[0:1], 32
    s_load_dwordx4 s[28:31], s[0:1], 48
    v_lshrrev_b32 v1, 6, v0
    v_lshlrev_b32 v22, 7, v0
    v_and_b32 v0, 63, v0
    v_readfirstlane_b32 s{sW}, v1
    s_and_b32 s{sG}, s2, 7
    s_lshr_b32 s{sM}, s2, 3""")
    X, vo = 4, 2
    stats_issue(a, X, vo)
    def early():
        a(f"""s_lshl_b32 s3, s{sG}, 22
        s_mov_b32 s14, {640*3840}
        s_mov_b32 s15, 0x20000
        s_mov_b32 s34, {WS_GROUP}
        s_mov_b32 s35, 0x20000
        s_mov_b64 s[12:13], s[10:11]
        s_mov_b32 s10, {2048*1280}
        s_mov_b32 s11, 0x20000
        s_add_u32 s32, s32, s3
        s_addc_u32 s33, s33, 0""")
        sync_init(a)
        stats_loads(a, X, vo)
    def late():
        a(f"""s_mov_b64 s[24:25], s[22:23]
        s_mov_b64 s[36:37], s[30:31]""")
        for i in (2, 3, 4, 5, 7): srd_const(a, i)
    cfg["early"] = early; cfg["late"] = late
    a(f"s_cmp_ge_u32 s{sM}, 30\ns_cbranch_scc1 Lhelp")
    st1(a, cfg, X, vo); ts("main.s1")
    publish(a, 1, end, first=True); ts("main.p1")
    bubble1(a, cfg)
    a("s_waitcnt lgkmcnt(0)\ns_branch Lattn\nLhelp:"); a.reset()
    a(f"""s_getpc_b64 s[40:41]
    Lpc:
    s_sub_u32 s40, s40, Lpc-Lstart
    s_subb_u32 s41, s41, 0
    s_sub_u32 s42, s{sM}, 30
    s_lshl_b32 s43, s42, 15
    v_add_u32 v22, s43, v22
    v_min_u32 v22, Lendcode-Lstart-4, v22
    v_mov_b32 v23, s41
    v_add_co_u32 v22, vcc, s40, v22
    v_addc_co_u32 v23, vcc, 0, v23, vcc
    global_load_dword v24, v[22:23], off
    s_waitcnt lgkmcnt(0)""")
    early(); late()
    a(f"s_lshl_b32 s42, s42, 2\ns_add_u32 s42, s42, s{sW}\ns_lshl_b32 s42, s42, 13\nv_lshlrev_b32 v25, 7, v0")
    NH = cfg.get("hwo", 13)
    prefetch(a, rWO, 42, 2, 65536, 25, 40)
    persist(a, cfg, 26)
    sync_post(a)
    stats_comp(a, X, vo, 28, 2)
    a(f"s_add_u32 s42, s42, {2*65536}")
    prefetch(a, rWO, 42, NH - 2, 65536, 25, 44)
    purity_load(a)
    publish(a, 1, end, first=True, flag=False)
    L = a.lab("Le")
    a(f"""s_cmp_lg_u32 s{sW}, 0
    s_cbranch_scc1 Lattn
    s_cmp_lg_u32 s{sM}, 31
    s_cbranch_scc1 Lattn
    s_mov_b32 s3, {W_FLG}
    v_mov_b32 v255, s{sTAG}
    v_mov_b32 v254, 0
    s_mov_b64 exec, 1
    buffer_store_dword v255, v254, {rWS}, s3 offen sc0 sc1
    s_mov_b64 exec, -1
    s_waitcnt vmcnt(0)
    Lattn:""")
    a.reset(); a("s_nop 7\ns_nop 7")
    c = st_attn_pre(a, cfg)
    await_(a, 1, end); ts("main.a1")
    st_attn(a, cfg, c); ts("main.at")
    publish(a, 2, end); ts("main.p2")
    a(f"s_cmp_ge_u32 s{sM}, 30\ns_cbranch_scc1 Lpf")
    bubble2(a, cfg)
    a(f"s_mul_i32 s57, s{sW}, 10240\ns_cmp_ge_u32 s{sM}, 20\ns_cbranch_scc1 Lpf0")
    st_k2(a, cfg); ts("main.k2")
    publish(a, 3, end)
    a("s_branch Lst3\nLpf0:"); a.reset()
    a("s_waitcnt lgkmcnt(0)\ns_barrier")
    for f in w1c_dma(a, cfg): f()
    a("Lpf:")
    a(f"""s_sub_u32 s42, s{sM}, 20
    s_lshl_b32 s42, s42, 13
    s_mul_i32 s43, s{sW}, {432*1280}
    s_add_u32 s42, s42, s43
    v_lshlrev_b32 v25, 7, v0""")
    prefetch(a, rW2, 42, cfg.get("pw2", 6), 12 * 8192, 25, 40)
    a(f"s_waitcnt vmcnt(0)\ns_cmp_ge_u32 s{sM}, 30\ns_cbranch_scc1 Lfin\nLst3:")
    a.reset(); a("s_nop 7\ns_nop 7")
    st3(a, cfg); ts("main.s3")
    publish(a, 4, end)
    st_k4(a, cfg)
    if ts.on: a("s_waitcnt vmcnt(0)")
    ts("main.k4")
    a("Lfin:")
    ts.flush(); print(ts.names, file=sys.stderr)
    a(f"{end}:\ns_endpgm\nLendcode:")
    return hdr + a.finalize() + kd(n + "_kernel")

def kd(name, vg=512, acc=256):
    return f""".section .rodata,"a"
.p2align 6
.amdhsa_kernel {name}
  .amdhsa_next_free_vgpr {vg}
  .amdhsa_next_free_sgpr 102
  .amdhsa_accum_offset {acc}
  .amdhsa_group_segment_fixed_size 0
  .amdhsa_kernarg_size 72
  .amdhsa_user_sgpr_count 2
  .amdhsa_user_sgpr_kernarg_segment_ptr 1
  .amdhsa_system_sgpr_workgroup_id_x 1
.end_amdhsa_kernel
"""

def header():
    ref = open(f"cdna_kernels/{NAME}.s.ref").read().split("\n")
    return "\n".join(l for l in ref if l.startswith(";") and "@launch" not in l and "Override" not in l and "grid=ceil" not in l) + "\n"

if __name__ == "__main__":
    out = sys.argv[1] if len(sys.argv) > 1 else f"cdna_kernels/{NAME}.s"
    cfg = eval(sys.argv[2]) if len(sys.argv) > 2 else {}
    open(out, "w").write(gen_P(cfg))
```
